```python
import torch

def _softmax(x, axis=-1):
    return torch.softmax(x, dim=axis)
def _gelu(x):
    return torch.nn.functional.gelu(x, approximate="tanh")
def _silu(x):
    return torch.nn.functional.silu(x)
def _sigmoid(x):
    return torch.sigmoid(x)
def _layernorm(x, axis=-1, eps=1e-5):
    m = x.mean(dim=axis, keepdim=True)
    v = x.var(dim=axis, keepdim=True, unbiased=False)
    return (x - m) / torch.sqrt(v + eps)
def _scatter_add(tgt, idx, src, axis=0):
    return tgt.clone().index_add_(axis, idx, src)
def _segment_sum(src, seg, n):
    out = torch.zeros((n,) + src.shape[1:], dtype=src.dtype)
    return out.index_add_(0, seg, src)
def _pad(x, pw):
    flat = tuple(v for pair in reversed(pw) for v in pair)
    return torch.nn.functional.pad(x, flat)

kernel_name = 'parallel_sum__ssm_conv_h3__mixer_s_mlp__prompt'

def setup_inputs():

    _w = (lambda a: (lambda t: t.to(torch.bfloat16) if t.is_floating_point() else t)(torch.as_tensor(a)))
    def _A_setup():
        B, S, D = 1, 2048, 640
        ks = 4
        return {
            "q": _w((lambda *s: torch.randn(*s, dtype=torch.bfloat16) * 0.05)(B, S, D)),
            "k": _w((lambda *s: torch.randn(*s, dtype=torch.bfloat16) * 0.8)(B, S, D)),
            "v": _w((lambda *s: torch.randn(*s, dtype=torch.bfloat16) * 0.8)(B, S, D)),
            "shift_k": _w((lambda *s: torch.randn(*s, dtype=torch.bfloat16) * 0.8)(D, ks) * 0.5),
            "ssm_k": _w((lambda *s: torch.randn(*s, dtype=torch.bfloat16) * 1.6)(D, S) * (1.0 / S ** 0.5)),
            "ssm_D": _w((lambda *s: torch.randn(*s, dtype=torch.bfloat16) * 0.8)(D)),
        }
    _A_in = _A_setup()

    def _B_setup():
        B, S, D, F = 1, 2048, 640, 1536
        return {
            "x":  _w((lambda *s: torch.randn(*s, dtype=torch.bfloat16) * 0.05)(B, S, D)),
            "w1": _w((lambda *s: torch.randn(*s, dtype=torch.bfloat16) * 3.2)(D, D) * (D ** -0.5)),
            "w2": _w((lambda *s: torch.randn(*s, dtype=torch.bfloat16) * 3.2)(D, D) * (D ** -0.5)),
            "w3": _w((lambda *s: torch.randn(*s, dtype=torch.bfloat16) * 3.2)(D, F) * (D ** -0.5)),
            "w4": _w((lambda *s: torch.randn(*s, dtype=torch.bfloat16) * 3.2)(F, D) * (F ** -0.5)),
        }
    _B_in = _B_setup()

    return {
        "A_q": _A_in["q"],
        "A_k": _A_in["k"],
        "A_v": _A_in["v"],
        "A_shift_k": _A_in["shift_k"],
        "A_ssm_k": _A_in["ssm_k"],
        "A_ssm_D": _A_in["ssm_D"],
        "B_x": _B_in["x"],
        "B_w1": _B_in["w1"],
        "B_w2": _B_in["w2"],
        "B_w3": _B_in["w3"],
        "B_w4": _B_in["w4"],
    }

def reference(A_q, A_k, A_v, A_shift_k, A_ssm_k, A_ssm_D, B_x, B_w1, B_w2, B_w3, B_w4):
    def _A_ref(q, k, v, shift_k, ssm_k, ssm_D):
        B, S, D = q.shape
        ks = shift_k.shape[-1]
        k_pad = _pad(k, ((0, 0), (ks - 1, 0), (0, 0)))
        k_shift = torch.zeros_like(k)
        for t in range(ks):
            k_shift = k_shift + k_pad[:, t:t + S, :] * shift_k[:, ks - 1 - t][None, None, :]
        kv = k_shift * v
        L = 2 * S
        kv_pad = _pad(kv, ((0, 0), (0, S), (0, 0)))
        kf_pad = _pad(ssm_k, ((0, 0), (0, S)))
        kv_f = (lambda x, axes=(-2,-1): torch.fft.rfft2(x.float(), dim=axes))(kv_pad[:, None, :, :], axes=(1, 2))
        kf_f = (lambda x, axes=(-2,-1): torch.fft.rfft2(x.float(), dim=axes))(kf_pad[:, None, :], axes=(1, 2))
        kf_f = (lambda x, *d: x.permute(*d))(kf_f, 1, 2, 0)
        y_f = kv_f * kf_f[None, :, :, :]
        y = (lambda x, s, axes=(-2,-1): torch.fft.irfft2(x, s=s, dim=axes).to(torch.bfloat16))(y_f, (1, L), axes=(1, 2))[:, 0, :S, :]
        y = y + kv * ssm_D[None, None, :]
        return q * y

    def _B_ref(x, w1, w2, w3, w4):
        B, S, D = x.shape
        h = _gelu(_layernorm(x, axis=-1) @ w1)
        c = D // 4
        g0 = _pad(h[:, :, 0*c:1*c], ((0, 0), (1, 0), (0, 0)))[:, :S, :]
        g1 = _pad(h[:, :, 1*c:2*c], ((0, 0), (0, 1), (0, 0)))[:, 1:, :]
        g2 = _pad(h[:, :, 2*c:3*c], ((0, 0), (2, 0), (0, 0)))[:, :S, :]
        g3 = _pad(h[:, :, 3*c:   ], ((0, 0), (0, 2), (0, 0)))[:, 2:, :]
        hs = torch.concatenate([g0, g1, g2, g3], axis=-1) @ w2
        x1 = x + hs
        h2 = _gelu(_layernorm(x1, axis=-1) @ w3) @ w4
        return x1 + h2

    x = A_q
    xn = _layernorm(x, axis=-1)
    return x + _A_ref(xn, A_k, A_v, A_shift_k, A_ssm_k, A_ssm_D) + _B_ref(xn, B_w1, B_w2, B_w3, B_w4)
```

```python
XN_P, A1_P, HS_P, X1_P, G_P = 0x0, 0x280000, 0x500000, 0x780000, 0xA00000
W1_P, W2_P, W3_P, W4_P = 0x1000000, 0x1100000, 0x1200000, 0x1400000
KVT, YT, ST2, CS3 = 0x1600000, 0x1900000, 0x1C00000, 0x1C40000
WS_BYTES = 0x2000000
ACT = 2048 * 640 * 2

class Asm:
    def __init__(self): self.L = []
    def __call__(self, s):
        for ln in s.split("\n"):
            ln = ln.strip()
            if ln: self.L.append(ln if ln.endswith(":") else "    " + ln)
    def text(self): return "\n".join(self.L) + "\n"

def srd(a, d, b, nbytes):
    a(f"s_mov_b32 s{d}, s{b}\ns_mov_b32 s{d+1}, s{b+1}\ns_mov_b32 s{d+2}, {hex(nbytes)}\ns_mov_b32 s{d+3}, 0x20000")

def vr(b, n): return f"v[{b}:{b+n-1}]"
def f2u(x):
    import struct
    return hex(struct.unpack("<I", struct.pack("<f", x))[0])

def rbf(a, v):
    a(f"v_cvt_pk_bf16_f32 v{v}, v{v}, v{v}\nv_and_b32 v{v}, 0xffff0000, v{v}")

def rowsum16(a, v, t):
    for rot in (8, 4, 2, 1):
        a(f"s_nop 1\nv_add_f32_dpp v{v}, v{v}, v{v} row_ror:{rot} row_mask:0xf bank_mask:0xf")

def gelu(a, regs, t, sC0, sC1):
    n = len(regs)
    for i, r in enumerate(regs): a(f"v_mul_f32 v{t+i}, v{r}, v{r}")
    for i, r in enumerate(regs): a(f"v_fma_f32 v{t+i}, v{t+i}, s{sC1}, v{sC0}")
    for i, r in enumerate(regs): a(f"v_mul_f32 v{t+i}, v{t+i}, v{r}")
    for i, r in enumerate(regs): a(f"v_exp_f32 v{t+i}, v{t+i}")
    if n < 2: a("s_nop 0")
    for i, r in enumerate(regs): a(f"v_add_f32 v{t+i}, 1.0, v{t+i}")
    for i, r in enumerate(regs): a(f"v_rcp_f32 v{t+i}, v{t+i}")
    if n < 2: a("s_nop 0")
    for i, r in enumerate(regs): a(f"v_mul_f32 v{r}, v{r}, v{t+i}")
import math
GC0 = -2.0 * math.sqrt(2 / math.pi) * math.log2(math.e)
GC1 = GC0 * 0.044715

def kdesc(name, vg, sg=96, acc=None):
    acc = acc or ((vg + 3) // 4) * 4
    return f""".p2align 6
.amdhsa_kernel {name}
  .amdhsa_next_free_vgpr {vg}
  .amdhsa_next_free_sgpr {sg}
  .amdhsa_accum_offset {acc}
  .amdhsa_group_segment_fixed_size 0
  .amdhsa_kernarg_size 112
  .amdhsa_user_sgpr_count 2
  .amdhsa_user_sgpr_kernarg_segment_ptr 1
  .amdhsa_system_sgpr_workgroup_id_x 1
.end_amdhsa_kernel
"""
def khead(name): return f".globl {name}\n.p2align 8\n.type {name},@function\n{name}:\n"
```

```python
from common import *
CH_LDS = 13056
L0, L1, RB = 32, 4192, 8320
def conv_body(a, sid):
    a(f"s_lshl_b32 s20, s{sid}, 2\ns_add_u32 s20, s20, s30\ns_lshl_b32 s21, s20, 12\ns_mul_i32 s22, s30, {CH_LDS}")
    a(f"s_add_u32 s23, s21, {KVT}\ns_add_u32 m0, s22, {RB}\ns_lshl_b32 s24, s20, 1")
    for i in range(4): a(f"buffer_load_dwordx4 v2, s[4:7], s23 offen offset:{1024*i} lds")
    a(f"s_add_u32 m0, s22, {L1}\nv_subrev_u32 v3, 4, v2")
    for i in range(4): a(f"buffer_load_dwordx4 v2, s[8:11], s21 offen offset:{1024*i} lds")
    for i in range(4): a(f"buffer_load_dwordx4 {vr(48+4*i,4)}, v2, s[8:11], s21 offen offset:{1024*i}")
    a("buffer_load_dword v64, v3, s[8:11], s21 offen")
    for i in range(1, 4): a(f"buffer_load_dword v{64+i}, v2, s[8:11], s21 offen offset:{1024*i-4}")
    a("v_mov_b32 v4, 0\nbuffer_load_ushort v68, v4, s[12:15], s24 offen")
    for i in range(4): a(f"v_mov_b32 v{8+i}, 0")
    a(f"v_add_u32 v5, s22, v2\ns_mov_b32 exec_hi, 0\nds_write_b128 v5, v[8:11] offset:{RB+4096}")
    a(f"s_mov_b64 exec, 3\nds_write_b128 v5, v[8:11] offset:{L0-32}\nds_write_b128 v5, v[8:11] offset:{L1-32}\ns_mov_b64 exec, -1")
    for i in range(32): a(f"v_mov_b32 v{16+i}, 0")
    a("v_and_b32 v6, 15, v1\nv_lshrrev_b32 v7, 4, v1")
    a(f"v_and_b32 v12, 1, v6\nv_mul_u32_u24 v12, {L1-L0}, v12\nv_lshrrev_b32 v13, 1, v6\nv_lshl_add_u32 v12, v13, 2, v12\nv_lshl_add_u32 v12, v7, 4, v12")
    a(f"s_add_u32 s25, s22, {L0-28}\nv_add_u32 v12, s25, v12\nv_add_u32 v13, 1024, v12\nv_add_u32 v14, 2048, v12\nv_add_u32 v15, 3072, v12")
    a(f"v_lshlrev_b32 v8, 5, v6\nv_lshlrev_b32 v9, 4, v7\nv_sub_u32 v9, v9, v8\ns_add_u32 s25, s22, {RB+480}\nv_add_u32 v9, s25, v9")
    a(f"v_lshlrev_b32 v10, 3, v7\nv_add_u32 v11, v8, v10\ns_add_u32 s25, s22, {RB+504}\nv_sub_u32 v10, s25, v11")
    a("v_cmp_eq_u32 vcc, 0, v1\ns_waitcnt vmcnt(1)\nv_cndmask_b32 v64, v64, v4, vcc")
    for i in range(4):
        g = 48 + 4*i
        h = 72 + 4*i
        a(f"v_alignbit_b32 v{h}, v{g}, v{64+i}, 16\nv_alignbit_b32 v{h+1}, v{g+1}, v{g}, 16\nv_alignbit_b32 v{h+2}, v{g+2}, v{g+1}, 16\nv_alignbit_b32 v{h+3}, v{g+3}, v{g+2}, 16")
        a(f"ds_write_b128 v5, {vr(h,4)} offset:{L0 + 1024*i}")
    a("s_waitcnt vmcnt(0) lgkmcnt(0)")
    def loads(ri):
        r = 2 * ri; buf = ri % 2; L = []
        for p in range(8):
            L.append(f"ds_read_b128 a[{64+32*buf+4*p}:{67+32*buf+4*p}], v9 offset:{512*(7-p)+32*r}")
            o = 128 * (p & 1) + 8 * r
            d = 32 * buf + 4 * p
            L.append(f"ds_read2_b32 a[{d}:{d+1}], v{12+(p>>1)} offset0:{o} offset1:{o+1}")
            L.append(f"ds_read2_b32 a[{d+2}:{d+3}], v{12+(p>>1)} offset0:{o+2} offset1:{o+3}")
        return L
    for l in loads(0): a(l)
    for ri in range(8):
        a("s_waitcnt lgkmcnt(0)")
        nxt = loads(ri + 1) if ri < 7 else [f"ds_read_b64 v[{48+2*j}:{49+2*j}], v10 offset:{512*(7-j)}" for j in range(8)]
        buf = ri % 2
        for p in range(8):
            for j in range(p, 8):
                q = j - p
                a(f"v_mfma_f32_16x16x32_bf16 {vr(16+4*j,4)}, a[{32*buf+4*p}:{32*buf+4*p+3}], a[{64+32*buf+4*q}:{67+32*buf+4*q}], {vr(16+4*j,4)}")
                if nxt: a(nxt.pop(0))
    a(f"v_lshlrev_b32 v68, 16, v68\ns_add_u32 s23, s21, {YT}\ns_waitcnt lgkmcnt(0)\ns_nop 4")
    for j in range(8):
        u0, u1 = 48 + 2*j, 49 + 2*j
        a(f"v_and_b32 v70, 0xffff0000, v{u1}\nv_lshlrev_b32 v71, 16, v{u1}\nv_and_b32 v72, 0xffff0000, v{u0}\nv_lshlrev_b32 v73, 16, v{u0}")
        for i in range(4): a(f"v_fmac_f32 v{16+4*j+i}, v{70+i}, v68")
        a(f"v_cvt_pk_bf16_f32 v{u0}, v{16+4*j}, v{17+4*j}\nv_cvt_pk_bf16_f32 v{u1}, v{18+4*j}, v{19+4*j}")
        a(f"buffer_store_dwordx2 v[{u0}:{u1}], v11, s[4:7], s23 offen offset:{512*j}")
```

```python
from common import *
def gemm_setup(a, g):
    a("s_and_b32 s20, s2, 7\ns_lshr_b32 s23, s2, 3")
    if g["NT"] == 1: a("s_lshr_b32 s21, s23, 3\ns_lshl_b32 s20, s20, 2\ns_add_u32 s21, s21, s20\ns_and_b32 s22, s23, 7")
    else: a("s_lshr_b32 s21, s23, 4\ns_lshl_b32 s20, s20, 1\ns_add_u32 s21, s21, s20\ns_and_b32 s22, s23, 15")
    NT, NF, KS = g["NT"], g["NF"], g["KS"]
    a(f"s_lshl_b32 s24, s21, 2\ns_add_u32 s24, s24, s30\ns_mul_i32 s24, s24, {NT}")
    a(f"s_mul_i32 s25, s24, {KS*1024}\ns_add_u32 s25, s25, {g['X']}")
    if NT == 2: a(f"s_add_u32 s26, s25, {KS*1024}")
    a(f"s_mul_i32 s28, s22, {KS*NF*1024}\ns_mul_i32 s29, s30, {NF*1024}\ns_add_u32 s28, s28, s29\ns_add_u32 s28, s28, {g['W']}")

def issue_stage(a, g, s):
    NT, NF, R = g["NT"], g["NF"], g["R"]
    slot = s % R
    so = s * 4 * NF * 1024
    a(f"s_add_u32 s33, s28, {so}\ns_add_u32 m0, s29, {slot*4*NF*1024}\ns_add_u32 s34, s33, 4096")
    for f in range(4): a(f"buffer_load_dwordx4 v2, s[4:7], s33 offen offset:{f*1024} lds")
    a(f"s_add_u32 m0, s29, {slot*4*NF*1024 + 4096}\ns_add_u32 s35, s25, {s*4096}")
    for f in range(4, NF): a(f"buffer_load_dwordx4 v2, s[4:7], s34 offen offset:{(f-4)*1024} lds")
    for n in range(NT):
        if n == 1: a(f"s_add_u32 s35, s26, {s*4096}")
        for kk in range(4):
            r = g["XB"] + ((slot * 4 + kk) * NT + n) * 4
            a(f"buffer_load_dwordx4 a[{r}:{r+3}], v2, s[4:7], s35 offen offset:{kk*1024}")

def gemm_main(a, g, extra_first=0):
    NT, NF, KS, R, PRE = g["NT"], g["NF"], g["KS"], g["R"], g["PRE"]
    NS = KS // 4
    per = NF + 4 * NT
    for s in range(PRE):
        if s == PRE - 1 and PRE * per > 50: a(f"s_waitcnt vmcnt({63 - per})")
        issue_stage(a, g, s)
    for i in range(NT * NF * 4): a(f"v_mov_b32 v{16+i}, 0")
    a("v_add_u32 v3, 0x10000, v2\nv_add_u32 v4, 0x20000, v2")
    issued = PRE
    WB = g["WB"]
    def rd(s, kk):
        base = (s % R) * 4 * NF * 1024 + kk * NF * 1024
        for f in range(NF):
            o = base + f * 1024
            a(f"ds_read_b128 {vr(WB + ((s*4+kk) % 2) * NF * 4 + f * 4, 4)}, v{2 + (o >> 16)} offset:{o & 0xffff}")
    for s in range(NS):
        a(f"s_waitcnt vmcnt({(issued - s - 1) * per})\ns_barrier")
        rd(s, 0)
        if issued < NS and (R >= NS or s >= 1 or PRE < R):
            issue_stage(a, g, issued); issued += 1
        for kk in range(4):
            if kk < 3: rd(s, kk + 1)
            for f in range(NF):
                a(f"s_waitcnt lgkmcnt({(NF if kk < 3 else 0) + NF - 1 - f})")
                for n in range(NT):
                    acc = 16 + (n * NF + f) * 4
                    x = g["XB"] + (((s % R) * 4 + kk) * NT + n) * 4
                    w = WB + ((s*4+kk) % 2) * NF * 4 + f * 4
                    a(f"v_mfma_f32_16x16x32_bf16 {vr(acc,4)}, {vr(w,4)}, a[{x}:{x+3}], {vr(acc,4)}")
    a("s_nop 7")

def pairs5(par):
    return [(0, [0, 1], 0), (1, [2, 3], 0), (2, [4], 0)] if par == 0 else [(0, [0], 8), (1, [1, 2], 0), (2, [3, 4], 0)]

def packed_io5(a, op, reg, vaddr, sreg, par):
    for ko, tl, half in pairs5(par):
        n = 2 * len(tl)
        a(f"buffer_{op}_dwordx{n} {vr(reg + 2*tl[0], n)}, v{vaddr}, s[4:7], s{sreg} offen offset:{ko*1024 + half}")

def by_parity(a, lab, fn):
    a(f"s_bitcmp1_b32 s22, 0\ns_cbranch_scc1 {lab}_odd"); fn(0)
    a(f"s_branch {lab}_j\n{lab}_odd:"); fn(1); a(f"{lab}_j:")

def xsum_q(a, regs, tmp, vperm):
    for i, r in enumerate(regs): a(f"ds_swizzle_b32 v{tmp+i}, v{r} offset:0x401F")
    a("s_waitcnt lgkmcnt(0)")
    for i, r in enumerate(regs): a(f"v_add_f32 v{r}, v{r}, v{tmp+i}")
    for i, r in enumerate(regs): a(f"ds_bpermute_b32 v{tmp+i}, v{vperm}, v{r}")
    a("s_waitcnt lgkmcnt(0)")
    for i, r in enumerate(regs): a(f"v_add_f32 v{r}, v{r}, v{tmp+i}")

G1 = dict(NT=1, NF=5, KS=20, R=4, PRE=4, X=A1_P, W=W1_P, WB=36, XB=0)
G2 = dict(NT=1, NF=5, KS=20, R=5, PRE=5, X=HS_P, W=W2_P, WB=36, XB=0)
G3 = dict(NT=2, NF=6, KS=20, R=5, PRE=4, X=X1_P, W=W3_P, WB=64, XB=0)
G4 = dict(NT=1, NF=5, KS=48, R=7, PRE=6, X=G_P, W=W4_P, WB=36, XB=0)

def unpack(a, dst, src, n):
    for i in range(n): a(f"v_lshlrev_b32 v{dst+2*i}, 16, v{src+i}\nv_and_b32 v{dst+2*i+1}, 0xffff0000, v{src+i}")

def g1_body(a):
    g = G1
    gemm_setup(a, g)
    gemm_main(a, g)
    a(f"s_mov_b32 s40, {f2u(GC1)}\nv_mov_b32 v5, {f2u(GC0)}")
    gelu(a, list(range(16, 36)), 40, 5, 40)
    a("s_lshr_b32 s36, s22, 1\ns_lshr_b32 s37, s36, 1\ns_add_u32 s37, s37, 1\ns_sub_u32 s38, 0, s37\ns_bitcmp1_b32 s36, 0\ns_cselect_b32 s37, s38, s37")
    a("s_lshl_b32 s38, s24, 4\ns_add_u32 s38, s38, s37")
    a("v_and_b32 v6, 15, v1\nv_add_u32 v6, s38, v6\nv_cmp_gt_u32 vcc, 0x800, v6\nv_and_b32 v6, 0x7ff, v6")
    a("v_lshrrev_b32 v7, 4, v6\nv_mul_u32_u24 v7, 20480, v7\nv_and_b32 v6, 15, v6\nv_lshl_add_u32 v7, v6, 4, v7")
    a("v_lshrrev_b32 v6, 4, v1\nv_lshl_add_u32 v7, v6, 8, v7")
    for i in range(10): a(f"v_cvt_pk_bf16_f32 v{40+i}, v{16+2*i}, v{17+2*i}\nv_cndmask_b32 v{40+i}, 0, v{40+i}, vcc")
    a(f"s_mul_i32 s39, s22, 5\ns_lshr_b32 s39, s39, 1\ns_lshl_b32 s39, s39, 10\ns_add_u32 s39, s39, {HS_P}")
    by_parity(a, "G1s", lambda p: packed_io5(a, "store", 40, 7, 39, p))

def g2_body(a):
    g = G2
    gemm_setup(a, g)
    a(f"s_mul_i32 s39, s22, 5\ns_lshr_b32 s39, s39, 1\ns_lshl_b32 s39, s39, 10\ns_mul_i32 s38, s24, 20480\ns_add_u32 s39, s39, s38")
    a(f"s_add_u32 s38, s39, {XN_P}\ns_add_u32 s39, s39, {X1_P}")
    by_parity(a, "G2l", lambda p: packed_io5(a, "load", 6, 2, 38, p))
    gemm_main(a, g)
    unpack(a, 40, 6, 10)
    for i in range(20): a(f"v_add_f32 v{16+i}, v{16+i}, v{40+i}")
    for i in range(10): a(f"v_cvt_pk_bf16_f32 v{6+i}, v{16+2*i}, v{17+2*i}")
    by_parity(a, "G2s", lambda p: packed_io5(a, "store", 6, 2, 39, p))
    unpack(a, 16, 6, 10)
    a("v_add_f32 v40, v16, v17\nv_mul_f32 v41, v16, v16\nv_fmac_f32 v41, v17, v17")
    for i in range(2, 20): a(f"v_add_f32 v40, v40, v{16+i}\nv_fmac_f32 v41, v{16+i}, v{16+i}")
    a("v_xor_b32 v44, 32, v1\nv_lshlrev_b32 v44, 2, v44")
    xsum_q(a, [40, 41], 42, 44)
    a(f"v_lshlrev_b32 v44, 6, v1\ns_lshl_b32 s36, s24, 10\ns_lshl_b32 s37, s22, 3\ns_add_u32 s36, s36, s37\ns_add_u32 s36, s36, {ST2}")
    a("s_mov_b64 exec, 0xffff\nbuffer_store_dwordx2 v[40:41], v44, s[4:7], s36 offen\ns_mov_b64 exec, -1")

def g3_body(a):
    g = G3
    gemm_setup(a, g)
    E = 272
    a("v_and_b32 v5, 15, v1\nv_lshrrev_b32 v6, 4, v1\nv_lshlrev_b32 v6, 4, v6\nv_lshl_add_u32 v5, v5, 6, v6")
    a(f"s_lshl_b32 s36, s24, 10\ns_add_u32 s36, s36, {ST2}\ns_mul_i32 s37, s22, 384\ns_add_u32 s37, s37, {CS3}")
    for n in range(2): a(f"buffer_load_dwordx4 {vr(8+4*n,4)}, v5, s[4:7], s36 offen offset:{1024*n}")
    for f in range(6): a(f"buffer_load_dwordx4 {vr(112+4*f,4)}, v6, s[4:7], s37 offen offset:{64*f}")
    gemm_main(a, g)
    a("v_add_f32 v8, v8, v10\nv_add_f32 v9, v9, v11\nv_add_f32 v10, v12, v14\nv_add_f32 v11, v13, v15")
    a("v_xor_b32 v7, 32, v1\nv_lshlrev_b32 v7, 2, v7")
    xsum_q(a, [8, 9, 10, 11], 12, 7)
    for n in range(2):
        m, v = 8 + 2*n, 9 + 2*n
        a(f"v_mul_f32 v{m}, {f2u(1/640)}, v{m}\nv_mul_f32 v{v}, {f2u(1/640)}, v{v}\nv_fma_f32 v{v}, -v{m}, v{m}, v{v}\nv_max_f32 v{v}, 0, v{v}")
        rbf(a, m); rbf(a, v)
        a(f"v_add_f32 v{v}, {f2u(1e-5)}, v{v}"); rbf(a, v)
        a(f"v_sqrt_f32 v{v}, v{v}\ns_nop 0"); rbf(a, v)
        a(f"v_rcp_f32 v{v}, v{v}\ns_nop 0")
    a(f"s_mov_b32 s40, {f2u(GC1)}\nv_mov_b32 v5, {f2u(GC0)}")
    a(f"s_mul_i32 s38, s24, {48*1024}\ns_mul_i32 s39, s22, 3072\ns_add_u32 s38, s38, s39\ns_add_u32 s38, s38, {G_P}\ns_add_u32 s39, s38, {48*1024}")
    for n in range(2):
        b = 16 + 24 * n
        for i in range(24): a(f"v_fma_f32 v{b+i}, -v{8+2*n}, v{112+i}, v{b+i}")
        for i in range(24): a(f"v_mul_f32 v{b+i}, v{b+i}, v{9+2*n}")
        gelu(a, list(range(b, b + 24)), 64, 5, 40)
        for i in range(12): a(f"v_cvt_pk_bf16_f32 v{88+12*n+i}, v{b+2*i}, v{b+2*i+1}")
        for p in range(3): a(f"buffer_store_dwordx4 {vr(88+12*n+4*p,4)}, v2, s[4:7], s{38+n} offen offset:{1024*p}")

YL = 7 * 20480
def g4_body(a):
    g = G4
    gemm_setup(a, g)
    a(f"s_mul_i32 s39, s22, 5\ns_lshr_b32 s39, s39, 1\ns_lshl_b32 s39, s39, 10\ns_mul_i32 s38, s24, 20480\ns_add_u32 s39, s39, s38")
    a(f"s_add_u32 s38, s39, {XN_P}\ns_add_u32 s39, s39, {X1_P}")
    def f(p):
        packed_io5(a, "load", 136, 2, 38, p); packed_io5(a, "load", 146, 2, 39, p)
    by_parity(a, "G4l", f)
    a("v_lshrrev_b32 v5, 3, v1\nv_and_b32 v6, 7, v1\nv_lshlrev_b32 v5, 12, v5\nv_lshl_add_u32 v5, v6, 4, v5")
    a(f"s_mul_i32 s36, s22, 80\ns_mul_i32 s37, s30, 24\ns_add_u32 s36, s36, s37\ns_lshl_b32 s36, s36, 12\ns_lshl_b32 s37, s21, 7\ns_add_u32 s36, s36, s37\ns_add_u32 s36, s36, {YT}")
    a(f"s_mul_i32 s37, s30, 3072\ns_add_u32 s37, s37, {YL}")
    for i in range(3):
        a(f"s_add_u32 m0, s37, {1024*i}\ns_nop 0\nbuffer_load_dwordx4 v5, s[4:7], s36 offen lds\ns_add_u32 s36, s36, 32768")
    a("s_mul_i32 s41, s24, 20480\ns_mul_i32 s42, s22, 160\ns_add_u32 s41, s41, s42\ns_mul_i32 s43, s30, 5376")
    for i in range(3):
        a(f"v_add_u32 v5, {64*i}, v1\nv_mul_u32_u24 v6, 6554, v5\nv_lshrrev_b32 v6, 16, v6\nv_mul_u32_u24 v7, 10, v6\nv_sub_u32 v7, v5, v7")
        a(f"v_mul_u32_u24 v{8+i}, 1280, v6\nv_lshl_add_u32 v{8+i}, v7, 4, v{8+i}")
        a(f"v_mul_u32_u24 v{12+i}, 336, v6\nv_lshl_add_u32 v{12+i}, v7, 5, v{12+i}\nv_add_u32 v{12+i}, s43, v{12+i}")
        if i == 2: a("v_mov_b32 v7, 0x7fff0000\nv_cmp_gt_u32 vcc, 32, v1\ns_nop 1\nv_cndmask_b32 v10, v7, v10, vcc")
        a(f"buffer_load_dwordx4 {vr(156+4*i,4)}, v{8+i}, s[8:11], s41 offen")
    gemm_main(a, g)
    a(f"v_lshrrev_b32 v5, 2, v1\nv_and_b32 v6, 3, v1\nv_lshlrev_b32 v5, 7, v5\nv_lshl_add_u32 v5, v6, 3, v5\ns_lshl_b32 s36, s30, 5\ns_add_u32 s36, s36, {YL}\nv_add_u32 v5, s36, v5")
    for f_ in range(5): a(f"ds_read_b64_tr_b16 v[{40+2*f_}:{41+2*f_}], v5 offset:{2048*f_}")
    unpack(a, 76, 136, 10); unpack(a, 96, 146, 10)
    a("s_waitcnt lgkmcnt(0)")
    unpack(a, 116, 40, 10)
    for i in range(20): a(f"v_add_f32 v{16+i}, v{16+i}, v{96+i}\nv_fmac_f32 v{16+i}, v{76+i}, v{116+i}")
    a("v_and_b32 v5, 15, v1\nv_lshrrev_b32 v6, 4, v1\nv_mul_u32_u24 v5, 336, v5\nv_lshl_add_u32 v5, v6, 4, v5\nv_add_u32 v5, s43, v5")
    for f_ in range(5): a(f"ds_write_b128 v5, {vr(16+4*f_,4)} offset:{64*f_}")
    unpack(a, 76, 156, 12)
    a("s_waitcnt lgkmcnt(0)")
    for i in range(3): a(f"ds_read_b128 {vr(40+8*i,4)}, v{12+i}\nds_read_b128 {vr(44+8*i,4)}, v{12+i} offset:16")
    for i in range(3):
        a(f"s_waitcnt lgkmcnt({4-2*i})")
        for j in range(8): a(f"v_add_f32 v{40+8*i+j}, v{40+8*i+j}, v{76+8*i+j}")
        for j in range(4): a(f"v_cvt_pk_bf16_f32 v{16+4*i+j}, v{40+8*i+2*j}, v{41+8*i+2*j}")
        a(f"buffer_store_dwordx4 {vr(16+4*i,4)}, v{8+i}, s[12:15], s41 offen")

def colsum_body(a, sid):
    a(f"s_lshl_b32 s20, s{sid}, 2\ns_add_u32 s20, s20, s30\ns_mul_i32 s21, s20, 10923\ns_lshr_b32 s21, s21, 16\ns_mul_i32 s22, s21, 6\ns_sub_u32 s22, s20, s22")
    a(f"s_mul_i32 s21, s21, {20*6*1024}\ns_lshl_b32 s22, s22, 10\ns_add_u32 s21, s21, s22\ns_add_u32 s21, s21, {W3_P}")
    for k in range(20): a(f"buffer_load_dwordx4 {vr(24+4*k,4)}, v2, s[4:7], s21 offen\ns_add_u32 s21, s21, 6144")
    for i in range(4): a(f"v_mov_b32 v{16+i}, 0\nv_mov_b32 v{20+i}, 0x3f803f80")
    for k in range(20): a(f"s_waitcnt vmcnt({19-k})\nv_mfma_f32_16x16x32_bf16 v[16:19], {vr(24+4*k,4)}, v[20:23], v[16:19]")
    a(f"v_lshrrev_b32 v5, 4, v1\nv_lshlrev_b32 v5, 4, v5\ns_lshl_b32 s20, s20, 6\ns_add_u32 s20, s20, {CS3}\ns_nop 7")
    a("s_mov_b32 exec_lo, 0x10001\ns_mov_b32 exec_hi, 0x10001\nbuffer_store_dwordx4 v[16:19], v5, s[4:7], s20 offen")
```

```python
from common import *
N_LN, N_KV, N_W = 128, 320, 170
def ln_stats(a, src, n, vm, vs, d):
    a(f"v_add_f32 v{vm}, v{src}, v{src+1}\nv_add_f32 v{vs}, v{src+2}, v{src+3}")
    for i in range(4, n, 2): a(f"v_add_f32 v{vm}, v{vm}, v{src+i}\nv_add_f32 v{vs}, v{vs}, v{src+i+1}")
    a(f"v_add_f32 v{vm}, v{vm}, v{vs}")
    rowsum16(a, vm, None)
    a(f"v_mul_f32 v{vm}, {f2u(1/640)}, v{vm}")
    for i in range(n): a(f"v_sub_f32 v{d+i}, v{src+i}, v{vm}")
    a(f"v_mul_f32 v{vs}, v{d}, v{d}\nv_mul_f32 v{vs+1}, v{d+1}, v{d+1}")
    for i in range(2, n, 2): a(f"v_fmac_f32 v{vs}, v{d+i}, v{d+i}\nv_fmac_f32 v{vs+1}, v{d+i+1}, v{d+i+1}")
    a(f"v_add_f32 v{vs}, v{vs}, v{vs+1}")
    rowsum16(a, vs, None)
    a(f"v_mul_f32 v{vs}, {f2u(1/640)}, v{vs}")
    rbf(a, vm); rbf(a, vs)
    a(f"v_add_f32 v{vs}, {f2u(1e-5)}, v{vs}"); rbf(a, vs)
    a(f"v_sqrt_f32 v{vs}, v{vs}\ns_nop 0"); rbf(a, vs)
    a(f"v_rcp_f32 v{vs}, v{vs}")
    for i in range(0, n, 2):
        a(f"v_sub_f32 v{d+i}, v{src+i}, v{vm}\nv_sub_f32 v{d+i+1}, v{src+i+1}, v{vm}")
        a(f"v_cvt_pk_bf16_f32 v{d+i}, v{d+i}, v{d+i+1}")
        a(f"v_and_b32 v{d+i+1}, 0xffff0000, v{d+i}\nv_lshlrev_b32 v{d+i}, 16, v{d+i}")
        a(f"v_mul_f32 v{d+i}, v{d+i}, v{vs}\nv_mul_f32 v{d+i+1}, v{d+i+1}, v{vs}")

def task_ln(a, sid):
    a("v_lshrrev_b32 v1, 4, v0\nv_and_b32 v2, 3, v0\nv_bfe_u32 v3, v0, 2, 2")
    a("v_mul_u32_u24 v4, 1280, v1\nv_lshl_add_u32 v4, v3, 6, v4\nv_lshl_add_u32 v4, v2, 3, v4")
    a(f"s_mul_i32 s20, s{sid}, 20480")
    for c in range(5):
        a(f"buffer_load_dwordx2 v[{10+4*c}:{11+4*c}], v4, s[8:11], s20 offen offset:{256*c}")
        a(f"buffer_load_dwordx2 v[{12+4*c}:{13+4*c}], v4, s[8:11], s20 offen offset:{256*c+32}")
    a("v_lshlrev_b32 v5, 4, v1\nv_lshl_add_u32 v5, v2, 8, v5\nv_lshl_add_u32 v5, v3, 10, v5")
    a("s_waitcnt vmcnt(0)")
    for i in range(20): a(f"v_lshlrev_b32 v{32+2*i}, 16, v{10+i}\nv_and_b32 v{33+2*i}, 0xffff0000, v{10+i}")
    ln_stats(a, 32, 40, 6, 8, 72)
    for i in range(20): a(f"v_cvt_pk_bf16_f32 v{10+i}, v{72+2*i}, v{73+2*i}")
    for c in range(5):
        a(f"s_add_u32 s21, s20, {XN_P + 4096*c}\nbuffer_store_dwordx4 {vr(10+4*c,4)}, v5, s[4:7], s21 offen")
    for i in range(20): a(f"v_lshlrev_b32 v{32+2*i}, 16, v{10+i}\nv_and_b32 v{33+2*i}, 0xffff0000, v{10+i}")
    ln_stats(a, 32, 40, 6, 8, 72)
    for i in range(20): a(f"v_cvt_pk_bf16_f32 v{32+i}, v{72+2*i}, v{73+2*i}")
    for c in range(5):
        a(f"s_add_u32 s21, s20, {A1_P + 4096*c}\nbuffer_store_dwordx4 {vr(32+4*c,4)}, v5, s[4:7], s21 offen")

def task_kv(a, sid):
    a(f"s_mul_i32 s20, s{sid}, 6554\ns_lshr_b32 s20, s20, 16\ns_mul_i32 s21, s20, 10\ns_sub_u32 s21, s{sid}, s21")
    a("v_and_b32 v1, 31, v0\nv_lshrrev_b32 v2, 5, v0")
    a("s_lshl_b32 s22, s20, 6\ns_lshl_b32 s23, s21, 7")
    a("v_lshl_add_u32 v3, v2, 3, s22")
    a("v_mul_u32_u24 v4, 1280, v3\nv_lshl_add_u32 v4, v1, 2, v4\nv_add_u32 v4, s23, v4")
    a("v_subrev_u32 v5, 3840, v4\nv_cmp_eq_u32 vcc, 0, v3\nv_mov_b32 v6, 0x7fff0000\ns_nop 1\nv_cndmask_b32 v5, v5, v6, vcc")
    a("s_lshl_b32 s24, s21, 9\nv_lshlrev_b32 v7, 4, v1\ns_movk_i32 s25, 5120")
    a("buffer_load_dwordx4 v[8:11], v7, s[16:19], s24 offen")
    for r in range(3): a(f"buffer_load_dword v{12+r}, v5, s[8:11], 0 offen offset:{1280*r}")
    for r in range(8): a(f"buffer_load_dword v{15+r}, v4, s[8:11], {'0' if r < 4 else 's25'} offen offset:{1280*(r%4)}")
    for r in range(8): a(f"buffer_load_dword v{23+r}, v4, s[12:15], {'0' if r < 4 else 's25'} offen offset:{1280*(r%4)}")
    a("v_sub_u32 v6, 2040, v3\nv_lshlrev_b32 v6, 1, v6\nv_lshl_add_u32 v6, v1, 13, v6")
    a(f"s_lshl_b32 s26, s21, 18\ns_add_u32 s26, s26, {KVT}\ns_add_u32 s27, s26, 4096")
    a("s_waitcnt vmcnt(8)")
    for c in range(2):
        for h in range(2): a(f"v_lshlrev_b32 v{32+4*c+2*h}, 16, v{8+2*c+h}\nv_and_b32 v{33+4*c+2*h}, 0xffff0000, v{8+2*c+h}")
    for r in range(11): a(f"v_lshlrev_b32 v{40+r}, 16, v{12+r}\nv_and_b32 v{52+r}, 0xffff0000, v{12+r}")
    for c in range(2):
        kb = 40 + 12 * c
        for i in range(8):
            d = 64 + 8 * c + i
            a(f"v_mul_f32 v{d}, v{kb+i}, v{32+4*c+3}")
            for j in (2, 1, 0): a(f"v_fmac_f32 v{d}, v{kb+i+3-j}, v{32+4*c+j}")
    a("s_waitcnt vmcnt(0)")
    for i in range(8):
        a(f"v_cvt_pk_bf16_f32 v31, v{64+i}, v{72+i}\nv_lshlrev_b32 v{64+i}, 16, v31\nv_and_b32 v{72+i}, 0xffff0000, v31")
        a(f"v_lshlrev_b32 v31, 16, v{23+i}\nv_mul_f32 v{64+i}, v{64+i}, v31\nv_and_b32 v31, 0xffff0000, v{23+i}\nv_mul_f32 v{72+i}, v{72+i}, v31")
    for c in range(2):
        for d in range(4): a(f"v_cvt_pk_bf16_f32 v{40+4*c+d}, v{64+8*c+7-2*d}, v{64+8*c+6-2*d}")
    a("buffer_store_dwordx4 v[40:43], v6, s[4:7], s26 offen\nbuffer_store_dwordx4 v[44:47], v6, s[4:7], s27 offen")

def task_w(a, sid, lab):
    mats = [(0, 40, 1280, 10, 5, 20, W1_P, 640*1280), (25, 42, 1280, 10, 5, 20, W2_P, 640*1280),
            (50, 44, 3072, 24, 6, 20, W3_P, 640*3072), (110, 46, 1280, 10, 5, 48, W4_P, 1536*1280)]
    for mi, (st, p, rs, ncb, ns, ks, dst, nb) in enumerate(mats):
        if mi < 3: a(f"s_cmp_ge_u32 s{sid}, {mats[mi+1][0]}\ns_cbranch_scc1 {lab}_m{mi+1}")
        srd(a, 8, p, nb)
        a(f"s_sub_u32 s20, s{sid}, {st}\ns_movk_i32 s21, {rs}\ns_movk_i32 s22, {ncb}\ns_mov_b32 s23, {(65536 + ncb - 1)//ncb}")
        a(f"s_movk_i32 s24, {ns}\ns_mov_b32 s25, {(65536 + ns - 1)//ns}\ns_movk_i32 s26, {ks}\ns_mov_b32 s27, {dst}")
        if mi < 3: a(f"s_branch {lab}_go\n{lab}_m{mi+1}:")
    a(f"{lab}_go:")
    a("s_lshl_b32 s20, s20, 2\ns_add_u32 s20, s20, s30")
    a("s_mul_i32 s28, s20, s23\ns_lshr_b32 s28, s28, 16\ns_mul_i32 s29, s28, s22\ns_sub_u32 s29, s20, s29")
    a("v_and_b32 v1, 63, v0\nv_lshrrev_b32 v2, 3, v1\nv_and_b32 v3, 7, v1\nv_mul_lo_u32 v2, v2, s21\nv_lshl_add_u32 v2, v3, 4, v2")
    a("s_mul_i32 s31, s28, s21\ns_lshl_b32 s31, s31, 6\ns_lshl_b32 s32, s29, 7\ns_add_u32 s31, s31, s32\ns_lshl_b32 s32, s21, 3")
    a("s_lshl_b32 s33, s30, 13")
    for i in range(8):
        a(f"s_add_u32 m0, s33, {1024*i}\ns_nop 0\nbuffer_load_dwordx4 v2, s[8:11], s31 offen lds\ns_add_u32 s31, s31, s32")
    a("v_lshrrev_b32 v4, 2, v1\nv_and_b32 v5, 3, v1\nv_lshlrev_b32 v4, 7, v4\nv_lshl_add_u32 v4, v5, 3, v4\nv_add_u32 v4, s33, v4")
    a("v_lshlrev_b32 v6, 4, v1")
    a("s_waitcnt vmcnt(0)")
    for kl in range(2):
        for i in range(4):
            for h in range(2):
                r = 8 + 16*kl + 4*i + 2*h
                a(f"ds_read_b64_tr_b16 v[{r}:{r+1}], v4 offset:{kl*4096 + h*2048 + i*32}")
    for i in range(4):
        a(f"s_lshl_b32 s34, s29, 2\ns_add_u32 s34, s34, {i}\ns_mul_i32 s35, s34, s25\ns_lshr_b32 s35, s35, 16\ns_mul_i32 s36, s35, s24\ns_sub_u32 s36, s34, s36")
        a(f"s_mul_i32 s35, s35, s26\ns_lshl_b32 s37, s28, 1\ns_add_u32 s35, s35, s37\ns_mul_i32 s35, s35, s24\ns_add_u32 s35, s35, s36")
        a(f"s_lshl_b32 s35, s35, 10\ns_add_u32 s{50+i}, s35, s27\ns_lshl_b32 s35, s24, 10\ns_add_u32 s{54+i}, s{50+i}, s35")
    a("s_waitcnt lgkmcnt(0)")
    for kl in range(2):
        for i in range(4): a(f"buffer_store_dwordx4 {vr(8+16*kl+4*i,4)}, v6, s[4:7], s{50+4*kl+i} offen")

def prep_kernel():
    a = Asm()
    a(f"s_cmp_ge_u32 s2, {N_LN+N_KV+N_W}\ns_cbranch_scc1 P_end")
    a("s_load_dwordx8 s[32:39], s[0:1], 0\ns_load_dwordx8 s[40:47], s[0:1], 56\ns_load_dwordx2 s[48:49], s[0:1], 104")
    a("v_lshrrev_b32 v1, 6, v0\ns_nop 1\nv_readfirstlane_b32 s30, v1\ns_waitcnt lgkmcnt(0)")
    srd(a, 4, 48, WS_BYTES)
    a(f"s_cmp_ge_u32 s2, {N_W}\ns_cbranch_scc1 P_notw")
    task_w(a, 2, "PW")
    a("s_endpgm\nP_notw:")
    a(f"s_sub_u32 s3, s2, {N_W}\ns_cmp_ge_u32 s3, {N_LN}\ns_cbranch_scc1 P_kv")
    srd(a, 8, 32, ACT)
    task_ln(a, 3)
    a(f"s_endpgm\nP_kv:\ns_sub_u32 s3, s3, {N_LN}")
    srd(a, 8, 34, ACT); srd(a, 12, 36, ACT); srd(a, 16, 38, 5120)
    task_kv(a, 3)
    a("P_end:\ns_endpgm")
    return a.text()
```

```python
import sys
from common import *
import prep, gemm, conv
NAME = "parallel_sum__ssm_conv_h3__mixer_s_mlp__prompt"
def pro(a, n, lab):
    a(f"s_cmp_ge_u32 s2, {n}\ns_cbranch_scc1 {lab}_end")
    a("s_load_dwordx2 s[48:49], s[0:1], 104\ns_load_dwordx2 s[50:51], s[0:1], 0\ns_load_dwordx4 s[52:55], s[0:1], 32\ns_load_dwordx2 s[56:57], s[0:1], 88")
    a("v_lshrrev_b32 v1, 6, v0\ns_nop 1\nv_readfirstlane_b32 s30, v1\nv_and_b32 v1, 63, v0\nv_lshlrev_b32 v2, 4, v1\ns_waitcnt lgkmcnt(0)")
    srd(a, 4, 48, WS_BYTES)
def k1():
    a = Asm(); pro(a, 256 + 160 + 24, "K1")
    a("s_cmp_ge_u32 s2, 256\ns_cbranch_scc1 K1_b")
    gemm.g1_body(a)
    a("s_endpgm\nK1_b:\ns_sub_u32 s3, s2, 256\ns_cmp_ge_u32 s3, 160\ns_cbranch_scc1 K1_c")
    srd(a, 8, 52, ACT); srd(a, 12, 54, 1280)
    conv.conv_body(a, 3)
    a("s_endpgm\nK1_c:\ns_sub_u32 s3, s3, 160")
    gemm.colsum_body(a, 3)
    a("K1_end:\ns_endpgm"); return a.text()
def kg(lab, body):
    a = Asm(); pro(a, 256, lab)
    if lab == "K4": srd(a, 8, 50, ACT); srd(a, 12, 56, ACT)
    body(a); a(f"{lab}_end:\ns_endpgm"); return a.text()
ks = [("prep_kernel", prep.prep_kernel(), prep.N_LN + prep.N_KV + prep.N_W, 32768, 112, 112),
      ("g1_kernel", k1(), 440, 81920, 104 + 128, 104),
      ("g2_kernel", kg("K2", gemm.g2_body), 256, 102400, 76 + 80, 76),
      ("g3_kernel", kg("K3", gemm.g3_body), 256, 122880, 136 + 160, 136),
      ("g4_kernel", kg("K4", gemm.g4_body), 256, 143360 + 12288, 168 + 112, 168)]
nempty = int(sys.argv[2]) if len(sys.argv) > 2 else 0
hdr = "".join(l for l in open(f"cdna_kernels/{NAME}.s.ref") if l.startswith(";   ") or l.startswith("; Kernarg"))
s = hdr
for n, t, g, lds, vg, acc in ks: s += f"; @launch kernel={n} grid=({g},1,1) block=(256,1,1) lds={lds}\n"
for i in range(nempty): s += "; @launch kernel=empty_kernel grid=(256,1,1) block=(256,1,1) lds=0\n"
s += '.amdgcn_target "amdgcn-amd-amdhsa--gfx950"\n.text\n'
for n, t, g, lds, vg, acc in ks: s += khead(n) + t
if nempty: s += khead("empty_kernel") + "    s_endpgm\n"
s += '.section .rodata,"a"\n'
for n, t, g, lds, vg, acc in ks: s += kdesc(n, vg, 96, acc)
if nempty: s += kdesc("empty_kernel", 8, 16)
open(sys.argv[1] if len(sys.argv) > 1 else f"cdna_kernels/{NAME}.s", "w").write(s)
```

```python
XN_P, A1_P, HS_P, X1_P, G_P = 0x0, 0x280000, 0x500000, 0x780000, 0xA00000
W1_P, W2_P, W3_P, W4_P = 0x1000000, 0x1100000, 0x1200000, 0x1400000
KVT, YT, ST2, CS3 = 0x1600000, 0x1900000, 0x1C00000, 0x1C40000
WS_BYTES = 0x2000000
ACT = 2048 * 640 * 2

class Asm:
    def __init__(self): self.L = []
    def __call__(self, s):
        for ln in s.split("\n"):
            ln = ln.strip()
            if ln: self.L.append(ln if ln.endswith(":") else "    " + ln)
    def text(self): return "\n".join(self.L) + "\n"

def srd(a, d, b, nbytes):
    a(f"s_mov_b32 s{d}, s{b}\ns_mov_b32 s{d+1}, s{b+1}\ns_mov_b32 s{d+2}, {hex(nbytes)}\ns_mov_b32 s{d+3}, 0x20000")

def vr(b, n): return f"v[{b}:{b+n-1}]"
def f2u(x):
    import struct
    return hex(struct.unpack("<I", struct.pack("<f", x))[0])

def rbf(a, v):
    a(f"v_cvt_pk_bf16_f32 v{v}, v{v}, v{v}\nv_and_b32 v{v}, 0xffff0000, v{v}")

def rowsum16(a, v, t):
    for rot in (8, 4, 2, 1):
        a(f"s_nop 1\nv_add_f32_dpp v{v}, v{v}, v{v} row_ror:{rot} row_mask:0xf bank_mask:0xf")

def gelu(a, regs, t, sC0, sC1):
    n = len(regs)
    for i, r in enumerate(regs): a(f"v_mul_f32 v{t+i}, v{r}, v{r}")
    for i, r in enumerate(regs): a(f"v_fma_f32 v{t+i}, v{t+i}, s{sC1}, v{sC0}")
    for i, r in enumerate(regs): a(f"v_mul_f32 v{t+i}, v{t+i}, v{r}")
    for i, r in enumerate(regs): a(f"v_exp_f32 v{t+i}, v{t+i}")
    if n < 2: a("s_nop 0")
    for i, r in enumerate(regs): a(f"v_add_f32 v{t+i}, 1.0, v{t+i}")
    for i, r in enumerate(regs): a(f"v_rcp_f32 v{t+i}, v{t+i}")
    if n < 2: a("s_nop 0")
    for i, r in enumerate(regs): a(f"v_mul_f32 v{r}, v{r}, v{t+i}")
import math
GC0 = -2.0 * math.sqrt(2 / math.pi) * math.log2(math.e)
GC1 = GC0 * 0.044715

def kdesc(name, vg, sg=96, acc=None):
    acc = acc or ((vg + 3) // 4) * 4
    return f""".p2align 6
.amdhsa_kernel {name}
  .amdhsa_next_free_vgpr {vg}
  .amdhsa_next_free_sgpr {sg}
  .amdhsa_accum_offset {acc}
  .amdhsa_group_segment_fixed_size 0
  .amdhsa_kernarg_size 112
  .amdhsa_user_sgpr_count 2
  .amdhsa_user_sgpr_kernarg_segment_ptr 1
  .amdhsa_system_sgpr_workgroup_id_x 1
.end_amdhsa_kernel
"""
def khead(name): return f".globl {name}\n.p2align 8\n.type {name},@function\n{name}:\n"

STAMP = 0x1D00000
import os
DIAG = bool(os.environ.get("DIAG"))
FL = 0x1C80000
FA, FB, FY, F1, F2, F3 = FL, FL + 0x400, FL + 0x800, FL + 0x1000, FL + 0x2000, FL + 0x3000
P_Q, P_K, P_V, P_SK, P_SSK, P_SSD, P_W1, P_W2, P_W3, P_W4, P_OUT, P_DBG, P_WS = 48, 50, 52, 54, 56, 58, 62, 64, 66, 68, 70, 72, 74
def stamp(a, slot):
    if DIAG: a(f"s_memrealtime s[{76+2*slot}:{77+2*slot}]")
def flush(a, nslots):
    if not DIAG: return
    a(f"s_waitcnt vmcnt(0)"); stamp(a, nslots - 1)
    a(f"s_lshl_b32 s20, s2, 2\ns_add_u32 s20, s20, s30\ns_lshl_b32 s20, s20, 7\ns_add_u32 s20, s20, {STAMP}")
    a(f"s_mov_b64 exec, 1\nv_mov_b32 v10, 0\ns_waitcnt lgkmcnt(0)")
    for sl in range(nslots):
        a(f"v_mov_b32 v8, s{76+2*sl}\nv_mov_b32 v9, s{77+2*sl}\nbuffer_store_dwordx2 v[8:9], v10, s[4:7], s20 offen offset:{8*sl}\ns_nop 2")
_n = [0]
def lab(p):
    _n[0] += 1; return f"{p}{_n[0]}"
def signal(a, soff_setup):
    l = lab("Lsig")
    a(f"s_waitcnt vmcnt(0)\ns_barrier\ns_cmp_lg_u32 s30, 0\ns_cbranch_scc1 {l}")
    a(soff_setup)
    a(f"v_mov_b32 v14, s31\nv_mov_b32 v15, 0\ns_mov_b64 exec, 1\nbuffer_store_dword v14, v15, s[4:7], s20 offen sc1\ns_mov_b64 exec, -1\n{l}:")
def poll(a, vaddr, soff, wide, t=12):
    l = lab("Lpoll")
    a(f"s_mov_b32 s46, {soff}\ns_mov_b32 s47, 0x40000\n{l}:")
    if wide:
        a(f"buffer_load_dwordx4 v[{t}:{t+3}], v{vaddr}, s[4:7], s46 offen sc1\ns_waitcnt vmcnt(0)")
        for i in range(4): a(f"v_xor_b32 v{t+i}, s31, v{t+i}")
        a(f"v_or3_b32 v{t}, v{t}, v{t+1}, v{t+2}\nv_or_b32 v{t}, v{t}, v{t+3}\nv_cmp_ne_u32 vcc, 0, v{t}")
    else:
        a(f"buffer_load_dword v{t}, v{vaddr}, s[4:7], s46 offen sc1\ns_waitcnt vmcnt(0)\nv_cmp_ne_u32 vcc, s31, v{t}")
    a(f"s_sub_u32 s47, s47, 1\ns_cmp_eq_u32 s47, 0\ns_cbranch_scc1 {l}_x\ns_nop 2\ns_cbranch_vccnz {l}\n{l}_x:")
```

```python
from common import *
CH_LDS = 13056
CV = 122880
L0, L1, RB = 32, 4192, 8320
AC, AD = 200, 232
def ids(a):
    a(f"s_mul_i32 s60, s2, 3\ns_add_u32 s60, s60, s30\ns_mul_i32 s61, s30, {CH_LDS}\ns_add_u32 s61, s61, {CV}")
    a("s_cmp_eq_u32 s30, 3\ns_cselect_b32 s60, 640, s60")
def skip(a, l): a(f"s_cmp_ge_u32 s60, 640\ns_cbranch_scc1 {l}")
def issue_k(a):
    srd(a, 8, P_SSK, ACT); srd(a, 12, P_SSD, 1280)
    a(f"s_lshl_b32 s20, s60, 12\ns_add_u32 m0, s61, {L1}\nv_subrev_u32 v3, 4, v2\ns_lshl_b32 s23, s60, 1")
    for i in range(4): a(f"buffer_load_dwordx4 v2, s[8:11], s20 offen offset:{1024*i} lds")
    for i in range(4): a(f"buffer_load_dwordx4 {vr(176+4*i,4)}, v2, s[8:11], s20 offen offset:{1024*i}")
    a("buffer_load_dword v192, v3, s[8:11], s20 offen")
    for i in range(1, 4): a(f"buffer_load_dword v{192+i}, v2, s[8:11], s20 offen offset:{1024*i-4}")
    a(f"v_mov_b32 v4, 0\nbuffer_load_ushort v{AD+7}, v4, s[12:15], s23 offen")
def build(a):
    for i in range(4): a(f"v_mov_b32 v{8+i}, 0")
    a(f"v_add_u32 v5, s61, v2\ns_mov_b32 exec_hi, 0\nds_write_b128 v5, v[8:11] offset:{RB+4096}")
    a(f"s_mov_b64 exec, 3\nds_write_b128 v5, v[8:11] offset:{L0-32}\nds_write_b128 v5, v[8:11] offset:{L1-32}\ns_mov_b64 exec, -1")
    for i in range(32): a(f"v_mov_b32 v{AC+i}, 0")
    a("v_and_b32 v6, 15, v1\nv_lshrrev_b32 v7, 4, v1\nv_cmp_eq_u32 vcc, 0, v1")
    A = AD
    a(f"v_and_b32 v{A}, 1, v6\nv_mul_u32_u24 v{A}, {L1-L0}, v{A}\nv_lshrrev_b32 v{A+1}, 1, v6\nv_lshl_add_u32 v{A}, v{A+1}, 2, v{A}\nv_lshl_add_u32 v{A}, v7, 4, v{A}")
    a(f"s_add_u32 s25, s61, {L0-28}\nv_add_u32 v{A}, s25, v{A}\nv_add_u32 v{A+1}, 1024, v{A}\nv_add_u32 v{A+2}, 2048, v{A}\nv_add_u32 v{A+3}, 3072, v{A}")
    a(f"v_lshlrev_b32 v12, 5, v6\nv_lshlrev_b32 v13, 4, v7\nv_sub_u32 v13, v13, v12\ns_add_u32 s25, s61, {RB+480}\nv_add_u32 v{A+4}, s25, v13")
    a(f"v_lshlrev_b32 v13, 3, v7\nv_add_u32 v{A+6}, v12, v13\ns_add_u32 s25, s61, {RB+504}\nv_sub_u32 v{A+5}, s25, v{A+6}")
    a(f"v_cndmask_b32 v192, v192, v8, vcc\nv_lshlrev_b32 v{A+7}, 16, v{A+7}")
    for i in range(4):
        g = 176 + 4*i; h = 240 + 4*i
        a(f"v_alignbit_b32 v{h}, v{g}, v{192+i}, 16\nv_alignbit_b32 v{h+1}, v{g+1}, v{g}, 16\nv_alignbit_b32 v{h+2}, v{g+2}, v{g+1}, 16\nv_alignbit_b32 v{h+3}, v{g+3}, v{g+2}, 16")
        a(f"ds_write_b128 v5, {vr(h,4)} offset:{L0 + 1024*i}")
def load_r(a):
    a(f"s_lshl_b32 s20, s60, 12\ns_add_u32 s20, s20, {KVT}\ns_add_u32 m0, s61, {RB}\ns_nop 0")
    for i in range(4): a(f"buffer_load_dwordx4 v2, s[4:7], s20 offen offset:{1024*i} sc1 lds")
def loads(ri):
    r = 2 * ri; buf = ri % 2; L = []
    for p in range(8):
        L.append(f"ds_read_b128 a[{64+32*buf+4*p}:{67+32*buf+4*p}], v{AD+4} offset:{512*(7-p)+32*r}")
        o = 128 * (p & 1) + 8 * r; d = 32 * buf + 4 * p
        L.append(f"ds_read2_b32 a[{d}:{d+1}], v{AD+(p>>1)} offset0:{o} offset1:{o+1}")
        L.append(f"ds_read2_b32 a[{d+2}:{d+3}], v{AD+(p>>1)} offset0:{o+2} offset1:{o+3}")
    return L
def steps(a, r0, r1):
    for l in loads(r0): a(l)
    for ri in range(r0, r1):
        a("s_waitcnt lgkmcnt(0)")
        if ri + 1 < r1: nxt = loads(ri + 1)
        elif ri == 7: nxt = [f"ds_read_b64 v[{176+2*j}:{177+2*j}], v{AD+5} offset:{512*(7-j)}" for j in range(8)]
        else: nxt = []
        buf = ri % 2
        for p in range(8):
            for j in range(p, 8):
                q = j - p
                a(f"v_mfma_f32_16x16x32_bf16 {vr(AC+4*j,4)}, a[{32*buf+4*p}:{32*buf+4*p+3}], a[{64+32*buf+4*q}:{67+32*buf+4*q}], {vr(AC+4*j,4)}")
                if nxt: a(nxt.pop(0))
def finish(a):
    a(f"s_lshl_b32 s20, s60, 12\ns_add_u32 s20, s20, {YT}\nv_add_u32 v5, s61, v{AD+6}\nv_add_u32 v6, s61, v2\ns_waitcnt lgkmcnt(0)\ns_nop 4")
    for j in range(8):
        u0, u1 = 176 + 2*j, 177 + 2*j
        a(f"v_and_b32 v8, 0xffff0000, v{u1}\nv_lshlrev_b32 v9, 16, v{u1}\nv_and_b32 v10, 0xffff0000, v{u0}\nv_lshlrev_b32 v11, 16, v{u0}")
        for i in range(4): a(f"v_fmac_f32 v{AC+4*j+i}, v{8+i}, v{AD+7}")
        a(f"v_cvt_pk_bf16_f32 v{u0}, v{AC+4*j}, v{AC+4*j+1}\nv_cvt_pk_bf16_f32 v{u1}, v{AC+4*j+2}, v{AC+4*j+3}")
        a(f"ds_write_b64 v5, v[{u0}:{u1}] offset:{512*j}")
    a("s_waitcnt lgkmcnt(0)")
    for i in range(4): a(f"ds_read_b128 {vr(240+4*i,4)}, v6 offset:{1024*i}")
    for i in range(4): a(f"s_waitcnt lgkmcnt({3-i})\nbuffer_store_dwordx4 {vr(240+4*i,4)}, v2, s[4:7], s20 offen offset:{1024*i} sc1")
```

```python
from common import *
def gemm_setup(a, g):
    a("s_and_b32 s20, s2, 7\ns_lshr_b32 s23, s2, 3")
    if g["NT"] == 1: a("s_lshr_b32 s21, s23, 3\ns_lshl_b32 s20, s20, 2\ns_add_u32 s21, s21, s20\ns_and_b32 s22, s23, 7")
    else: a("s_lshr_b32 s21, s23, 4\ns_lshl_b32 s20, s20, 1\ns_add_u32 s21, s21, s20\ns_and_b32 s22, s23, 15")
    NT, NF, KS = g["NT"], g["NF"], g["KS"]
    a(f"s_lshl_b32 s24, s21, 2\ns_add_u32 s24, s24, s30\ns_mul_i32 s24, s24, {NT}")
    a(f"s_mul_i32 s25, s24, {KS*1024}\ns_add_u32 s25, s25, {g['X']}")
    if NT == 2: a(f"s_add_u32 s26, s25, {KS*1024}")
    a(f"s_mul_i32 s28, s22, {KS*NF*1024}\ns_mul_i32 s29, s30, {NF*1024}\ns_add_u32 s28, s28, s29\ns_add_u32 s28, s28, {g['W']}")

def issue_stage(a, g, s):
    NT, NF, R = g["NT"], g["NF"], g["R"]
    slot = s % R
    so = s * 4 * NF * 1024
    a(f"s_add_u32 s33, s28, {so}\ns_add_u32 m0, s29, {slot*4*NF*1024}\ns_add_u32 s34, s33, 4096")
    for f in range(4): a(f"buffer_load_dwordx4 v2, s[4:7], s33 offen offset:{f*1024} lds")
    a(f"s_add_u32 m0, s29, {slot*4*NF*1024 + 4096}\ns_add_u32 s35, s25, {s*4096}")
    for f in range(4, NF): a(f"buffer_load_dwordx4 v2, s[4:7], s34 offen offset:{(f-4)*1024} lds")
    for n in range(NT):
        if n == 1: a(f"s_add_u32 s35, s26, {s*4096}")
        for kk in range(4):
            r = g["XB"] + ((slot * 4 + kk) * NT + n) * 4
            a(f"buffer_load_dwordx4 a[{r}:{r+3}], v2, s[4:7], s35 offen offset:{kk*1024}")

def gemm_main(a, g, extra_first=0):
    NT, NF, KS, R, PRE = g["NT"], g["NF"], g["KS"], g["R"], g["PRE"]
    NS = KS // 4
    per = NF + 4 * NT
    for s in range(PRE):
        if s == PRE - 1 and PRE * per > 50: a(f"s_waitcnt vmcnt({63 - per})")
        issue_stage(a, g, s)
    stamp(a, 1)
    for i in range(NT * NF * 4): a(f"v_mov_b32 v{16+i}, 0")
    a("v_add_u32 v3, 0x10000, v2\nv_add_u32 v4, 0x20000, v2")
    issued = PRE
    WB = g["WB"]
    def rd(s, kk):
        base = (s % R) * 4 * NF * 1024 + kk * NF * 1024
        for f in range(NF):
            o = base + f * 1024
            a(f"ds_read_b128 {vr(WB + ((s*4+kk) % 2) * NF * 4 + f * 4, 4)}, v{2 + (o >> 16)} offset:{o & 0xffff}")
    for s in range(NS):
        a(f"s_waitcnt vmcnt({(issued - s - 1) * per})\ns_barrier")
        if s == 0: stamp(a, 2)
        if s == NS - 1: stamp(a, 3)
        rd(s, 0)
        if issued < NS and (R >= NS or s >= 1 or PRE < R):
            issue_stage(a, g, issued); issued += 1
        for kk in range(4):
            if kk < 3: rd(s, kk + 1)
            for f in range(NF):
                a(f"s_waitcnt lgkmcnt({(NF if kk < 3 else 0) + NF - 1 - f})")
                for n in range(NT):
                    acc = 16 + (n * NF + f) * 4
                    x = g["XB"] + (((s % R) * 4 + kk) * NT + n) * 4
                    w = WB + ((s*4+kk) % 2) * NF * 4 + f * 4
                    a(f"v_mfma_f32_16x16x32_bf16 {vr(acc,4)}, {vr(w,4)}, a[{x}:{x+3}], {vr(acc,4)}")
    a("s_nop 7"); stamp(a, 4)

def pairs5(par):
    return [(0, [0, 1], 0), (1, [2, 3], 0), (2, [4], 0)] if par == 0 else [(0, [0], 8), (1, [1, 2], 0), (2, [3, 4], 0)]

def packed_io5(a, op, reg, vaddr, sreg, par):
    for ko, tl, half in pairs5(par):
        n = 2 * len(tl)
        a(f"buffer_{op}_dwordx{n} {vr(reg + 2*tl[0], n)}, v{vaddr}, s[4:7], s{sreg} offen offset:{ko*1024 + half}")

def by_parity(a, lab, fn):
    a(f"s_bitcmp1_b32 s22, 0\ns_cbranch_scc1 {lab}_odd"); fn(0)
    a(f"s_branch {lab}_j\n{lab}_odd:"); fn(1); a(f"{lab}_j:")

def xsum_q(a, regs, tmp, vperm):
    for i, r in enumerate(regs): a(f"ds_swizzle_b32 v{tmp+i}, v{r} offset:0x401F")
    a("s_waitcnt lgkmcnt(0)")
    for i, r in enumerate(regs): a(f"v_add_f32 v{r}, v{r}, v{tmp+i}")
    for i, r in enumerate(regs): a(f"ds_bpermute_b32 v{tmp+i}, v{vperm}, v{r}")
    a("s_waitcnt lgkmcnt(0)")
    for i, r in enumerate(regs): a(f"v_add_f32 v{r}, v{r}, v{tmp+i}")

G1 = dict(NT=1, NF=5, KS=20, R=4, PRE=4, X=A1_P, W=W1_P, WB=36, XB=0)
G2 = dict(NT=1, NF=5, KS=20, R=5, PRE=5, X=HS_P, W=W2_P, WB=36, XB=0)
G3 = dict(NT=2, NF=6, KS=20, R=5, PRE=4, X=X1_P, W=W3_P, WB=64, XB=0)
G4 = dict(NT=1, NF=5, KS=48, R=7, PRE=6, X=G_P, W=W4_P, WB=36, XB=0)

def unpack(a, dst, src, n):
    for i in range(n): a(f"v_lshlrev_b32 v{dst+2*i}, 16, v{src+i}\nv_and_b32 v{dst+2*i+1}, 0xffff0000, v{src+i}")

def g1_body(a):
    g = G1
    gemm_setup(a, g)
    gemm_main(a, g)
    a(f"s_mov_b32 s40, {f2u(GC1)}\nv_mov_b32 v5, {f2u(GC0)}")
    gelu(a, list(range(16, 36)), 40, 5, 40)
    a("s_lshr_b32 s36, s22, 1\ns_lshr_b32 s37, s36, 1\ns_add_u32 s37, s37, 1\ns_sub_u32 s38, 0, s37\ns_bitcmp1_b32 s36, 0\ns_cselect_b32 s37, s38, s37")
    a("s_lshl_b32 s38, s24, 4\ns_add_u32 s38, s38, s37")
    a("v_and_b32 v6, 15, v1\nv_add_u32 v6, s38, v6\nv_cmp_gt_u32 vcc, 0x800, v6\nv_and_b32 v6, 0x7ff, v6")
    a("v_lshrrev_b32 v7, 4, v6\nv_mul_u32_u24 v7, 20480, v7\nv_and_b32 v6, 15, v6\nv_lshl_add_u32 v7, v6, 4, v7")
    a("v_lshrrev_b32 v6, 4, v1\nv_lshl_add_u32 v7, v6, 8, v7")
    for i in range(10): a(f"v_cvt_pk_bf16_f32 v{40+i}, v{16+2*i}, v{17+2*i}\nv_cndmask_b32 v{40+i}, 0, v{40+i}, vcc")
    a(f"s_mul_i32 s39, s22, 5\ns_lshr_b32 s39, s39, 1\ns_lshl_b32 s39, s39, 10\ns_add_u32 s39, s39, {HS_P}")
    by_parity(a, "G1s", lambda p: packed_io5(a, "store", 40, 7, 39, p))

def g2_body(a):
    g = G2
    gemm_setup(a, g)
    a(f"s_mul_i32 s39, s22, 5\ns_lshr_b32 s39, s39, 1\ns_lshl_b32 s39, s39, 10\ns_mul_i32 s38, s24, 20480\ns_add_u32 s39, s39, s38")
    a(f"s_add_u32 s38, s39, {XN_P}\ns_add_u32 s39, s39, {X1_P}")
    by_parity(a, "G2l", lambda p: packed_io5(a, "load", 6, 2, 38, p))
    gemm_main(a, g)
    unpack(a, 40, 6, 10)
    for i in range(20): a(f"v_add_f32 v{16+i}, v{16+i}, v{40+i}")
    for i in range(10): a(f"v_cvt_pk_bf16_f32 v{6+i}, v{16+2*i}, v{17+2*i}")
    by_parity(a, "G2s", lambda p: packed_io5(a, "store", 6, 2, 39, p))
    unpack(a, 16, 6, 10)
    a("v_add_f32 v40, v16, v17\nv_mul_f32 v41, v16, v16\nv_fmac_f32 v41, v17, v17")
    for i in range(2, 20): a(f"v_add_f32 v40, v40, v{16+i}\nv_fmac_f32 v41, v{16+i}, v{16+i}")
    a("v_xor_b32 v44, 32, v1\nv_lshlrev_b32 v44, 2, v44")
    xsum_q(a, [40, 41], 42, 44)
    a(f"v_lshlrev_b32 v44, 6, v1\ns_lshl_b32 s36, s24, 10\ns_lshl_b32 s37, s22, 3\ns_add_u32 s36, s36, s37\ns_add_u32 s36, s36, {ST2}")
    a("s_mov_b64 exec, 0xffff\nbuffer_store_dwordx2 v[40:41], v44, s[4:7], s36 offen\ns_mov_b64 exec, -1")

def g3_body(a):
    g = G3
    gemm_setup(a, g)
    E = 272
    a("v_and_b32 v5, 15, v1\nv_lshrrev_b32 v6, 4, v1\nv_lshlrev_b32 v6, 4, v6\nv_lshl_add_u32 v5, v5, 6, v6")
    a(f"s_lshl_b32 s36, s24, 10\ns_add_u32 s36, s36, {ST2}\ns_mul_i32 s37, s22, 384\ns_add_u32 s37, s37, {CS3}")
    for n in range(2): a(f"buffer_load_dwordx4 {vr(8+4*n,4)}, v5, s[4:7], s36 offen offset:{1024*n}")
    for f in range(6): a(f"buffer_load_dwordx4 {vr(112+4*f,4)}, v6, s[4:7], s37 offen offset:{64*f}")
    gemm_main(a, g)
    a("v_add_f32 v8, v8, v10\nv_add_f32 v9, v9, v11\nv_add_f32 v10, v12, v14\nv_add_f32 v11, v13, v15")
    a("v_xor_b32 v7, 32, v1\nv_lshlrev_b32 v7, 2, v7")
    xsum_q(a, [8, 9, 10, 11], 12, 7)
    for n in range(2):
        m, v = 8 + 2*n, 9 + 2*n
        a(f"v_mul_f32 v{m}, {f2u(1/640)}, v{m}\nv_mul_f32 v{v}, {f2u(1/640)}, v{v}\nv_fma_f32 v{v}, -v{m}, v{m}, v{v}\nv_max_f32 v{v}, 0, v{v}")
        rbf(a, m); rbf(a, v)
        a(f"v_add_f32 v{v}, {f2u(1e-5)}, v{v}"); rbf(a, v)
        a(f"v_sqrt_f32 v{v}, v{v}\ns_nop 0"); rbf(a, v)
        a(f"v_rcp_f32 v{v}, v{v}\ns_nop 0")
    a(f"s_mov_b32 s40, {f2u(GC1)}\nv_mov_b32 v5, {f2u(GC0)}")
    a(f"s_mul_i32 s38, s24, {48*1024}\ns_mul_i32 s39, s22, 3072\ns_add_u32 s38, s38, s39\ns_add_u32 s38, s38, {G_P}\ns_add_u32 s39, s38, {48*1024}")
    for n in range(2):
        b = 16 + 24 * n
        for i in range(24): a(f"v_fma_f32 v{b+i}, -v{8+2*n}, v{112+i}, v{b+i}")
        for i in range(24): a(f"v_mul_f32 v{b+i}, v{b+i}, v{9+2*n}")
        gelu(a, list(range(b, b + 24)), 64, 5, 40)
        for i in range(12): a(f"v_cvt_pk_bf16_f32 v{88+12*n+i}, v{b+2*i}, v{b+2*i+1}")
        for p in range(3): a(f"buffer_store_dwordx4 {vr(88+12*n+4*p,4)}, v2, s[4:7], s{38+n} offen offset:{1024*p}")

YL = 7 * 20480
def g4_body(a):
    g = G4
    gemm_setup(a, g)
    a(f"s_mul_i32 s39, s22, 5\ns_lshr_b32 s39, s39, 1\ns_lshl_b32 s39, s39, 10\ns_mul_i32 s38, s24, 20480\ns_add_u32 s39, s39, s38")
    a(f"s_add_u32 s38, s39, {XN_P}\ns_add_u32 s39, s39, {X1_P}")
    def f(p):
        packed_io5(a, "load", 136, 2, 38, p); packed_io5(a, "load", 146, 2, 39, p)
    by_parity(a, "G4l", f)
    a("v_lshrrev_b32 v5, 3, v1\nv_and_b32 v6, 7, v1\nv_lshlrev_b32 v5, 12, v5\nv_lshl_add_u32 v5, v6, 4, v5")
    a(f"s_mul_i32 s36, s22, 80\ns_mul_i32 s37, s30, 24\ns_add_u32 s36, s36, s37\ns_lshl_b32 s36, s36, 12\ns_lshl_b32 s37, s21, 7\ns_add_u32 s36, s36, s37\ns_add_u32 s36, s36, {YT}")
    a(f"s_mul_i32 s37, s30, 3072\ns_add_u32 s37, s37, {YL}")
    for i in range(3):
        a(f"s_add_u32 m0, s37, {1024*i}\ns_nop 0\nbuffer_load_dwordx4 v5, s[4:7], s36 offen lds\ns_add_u32 s36, s36, 32768")
    a("s_mul_i32 s41, s24, 20480\ns_mul_i32 s42, s22, 160\ns_add_u32 s41, s41, s42\ns_mul_i32 s43, s30, 5376")
    for i in range(3):
        a(f"v_add_u32 v5, {64*i}, v1\nv_mul_u32_u24 v6, 6554, v5\nv_lshrrev_b32 v6, 16, v6\nv_mul_u32_u24 v7, 10, v6\nv_sub_u32 v7, v5, v7")
        a(f"v_mul_u32_u24 v{8+i}, 1280, v6\nv_lshl_add_u32 v{8+i}, v7, 4, v{8+i}")
        a(f"v_mul_u32_u24 v{12+i}, 336, v6\nv_lshl_add_u32 v{12+i}, v7, 5, v{12+i}\nv_add_u32 v{12+i}, s43, v{12+i}")
        if i == 2: a("v_mov_b32 v7, 0x7fff0000\nv_cmp_gt_u32 vcc, 32, v1\ns_nop 1\nv_cndmask_b32 v10, v7, v10, vcc")
        a(f"buffer_load_dwordx4 {vr(156+4*i,4)}, v{8+i}, s[8:11], s41 offen")
    gemm_main(a, g)
    a(f"v_lshrrev_b32 v5, 2, v1\nv_and_b32 v6, 3, v1\nv_lshlrev_b32 v5, 7, v5\nv_lshl_add_u32 v5, v6, 3, v5\ns_lshl_b32 s36, s30, 5\ns_add_u32 s36, s36, {YL}\nv_add_u32 v5, s36, v5")
    for f_ in range(5): a(f"ds_read_b64_tr_b16 v[{40+2*f_}:{41+2*f_}], v5 offset:{2048*f_}")
    unpack(a, 76, 136, 10); unpack(a, 96, 146, 10)
    a("s_waitcnt lgkmcnt(0)")
    unpack(a, 116, 40, 10)
    for i in range(20): a(f"v_add_f32 v{16+i}, v{16+i}, v{96+i}\nv_fmac_f32 v{16+i}, v{76+i}, v{116+i}")
    a("v_and_b32 v5, 15, v1\nv_lshrrev_b32 v6, 4, v1\nv_mul_u32_u24 v5, 336, v5\nv_lshl_add_u32 v5, v6, 4, v5\nv_add_u32 v5, s43, v5")
    for f_ in range(5): a(f"ds_write_b128 v5, {vr(16+4*f_,4)} offset:{64*f_}")
    unpack(a, 76, 156, 12)
    a("s_waitcnt lgkmcnt(0)")
    for i in range(3): a(f"ds_read_b128 {vr(40+8*i,4)}, v{12+i}\nds_read_b128 {vr(44+8*i,4)}, v{12+i} offset:16")
    for i in range(3):
        a(f"s_waitcnt lgkmcnt({4-2*i})")
        for j in range(8): a(f"v_add_f32 v{40+8*i+j}, v{40+8*i+j}, v{76+8*i+j}")
        for j in range(4): a(f"v_cvt_pk_bf16_f32 v{16+4*i+j}, v{40+8*i+2*j}, v{41+8*i+2*j}")
        a(f"buffer_store_dwordx4 {vr(16+4*i,4)}, v{8+i}, s[12:15], s41 offen")

def colsum_body(a, sid):
    a(f"s_lshl_b32 s20, s{sid}, 2\ns_add_u32 s20, s20, s30\ns_mul_i32 s21, s20, 10923\ns_lshr_b32 s21, s21, 16\ns_mul_i32 s22, s21, 6\ns_sub_u32 s22, s20, s22")
    a(f"s_mul_i32 s21, s21, {20*6*1024}\ns_lshl_b32 s22, s22, 10\ns_add_u32 s21, s21, s22\ns_add_u32 s21, s21, {W3_P}")
    for k in range(20): a(f"buffer_load_dwordx4 {vr(24+4*k,4)}, v2, s[4:7], s21 offen\ns_add_u32 s21, s21, 6144")
    for i in range(4): a(f"v_mov_b32 v{16+i}, 0\nv_mov_b32 v{20+i}, 0x3f803f80")
    for k in range(20): a(f"s_waitcnt vmcnt({19-k})\nv_mfma_f32_16x16x32_bf16 v[16:19], {vr(24+4*k,4)}, v[20:23], v[16:19]")
    a(f"v_lshrrev_b32 v5, 4, v1\nv_lshlrev_b32 v5, 4, v5\ns_lshl_b32 s20, s20, 6\ns_add_u32 s20, s20, {CS3}\ns_nop 7")
    a("s_mov_b32 exec_lo, 0x10001\ns_mov_b32 exec_hi, 0x10001\nbuffer_store_dwordx4 v[16:19], v5, s[4:7], s20 offen")
```

```python
from common import *
from gemm import pairs5, by_parity as _bp, xsum_q, unpack
def by_parity(a, fn): _bp(a, lab("Par"), fn)
def packed_io5(a, op, reg, vaddr, sreg, par):
    for ko, tl, half in pairs5(par):
        n = 2 * len(tl)
        a(f"buffer_{op}_dwordx{n} {vr(reg + 2*tl[0], n)}, v{vaddr}, s[4:7], s{sreg} offen offset:{ko*1024 + half} sc1")
G1 = dict(NT=1, NF=5, KS=20, R=5, X=A1_P, W=W1_P, WB=36)
G2 = dict(NT=1, NF=5, KS=20, R=5, X=HS_P, W=W2_P, WB=36)
G3 = dict(NT=2, NF=6, KS=20, R=5, X=X1_P, W=W3_P, WB=64)
G4 = dict(NT=1, NF=5, KS=48, R=7, X=G_P, W=W4_P, WB=36)
CSL = 162048
YL = 7 * 20480
def setup(a, g):
    NT, NF, KS = g["NT"], g["NF"], g["KS"]
    tb, c = (21, 22) if NT == 1 else (44, 45)
    a(f"s_lshl_b32 s24, s{tb}, 2\ns_add_u32 s24, s24, s30\ns_mul_i32 s24, s24, {NT}")
    a(f"s_mul_i32 s25, s24, {KS*1024}\ns_add_u32 s25, s25, {g['X']}\ns_add_u32 s26, s25, {KS*1024}")
    a(f"s_mul_i32 s27, s{c}, {KS*NF*1024}\ns_add_u32 s27, s27, {g['W']}\ns_mul_i32 s29, s30, {NF*1024}\ns_add_u32 s28, s27, s29")
def w_items(g, s):
    NF, R = g["NF"], g["R"]; out = []
    for f in range(NF):
        pre = ""
        if f % 4 == 0: pre = f"s_add_u32 m0, s29, {(s % R)*4*NF*1024 + f*1024}\ns_add_u32 s33, s28, {s*4*NF*1024 + f*1024}\n"
        out.append((("w", s), pre + f"buffer_load_dwordx4 v2, s[4:7], s33 offen offset:{(f % 4)*1024} sc1 lds"))
    return out
def x_items(g, s):
    NT = g["NT"]; out = []
    for kk in range(4):
        for n in range(NT):
            pre = f"s_add_u32 s{35+n}, s{25+n}, {s*4096}\n" if kk == 0 else ""
            r = ((s*4 + kk) * NT + n) * 4
            out.append((("x", s*4 + kk), pre + f"buffer_load_dwordx4 a[{r}:{r+3}], v2, s[4:7], s{35+n} offen offset:{kk*1024} sc1"))
    return out
def loader_all(a, g, nfr):
    for i in range(nfr):
        if i % 4 == 0: a(f"s_movk_i32 s34, 0\ns_add_u32 m0, s34, {i*1024}\ns_add_u32 s33, s27, {i*1024}") if False else a(f"s_mov_b32 m0, {i*1024}\ns_add_u32 s33, s27, {i*1024}")
        if i >= 56 and i % 4 == 0: a("s_waitcnt vmcnt(52)")
        a(f"buffer_load_dwordx4 v2, s[4:7], s33 offen offset:{(i % 4)*1024} sc1 lds")
def gemm_loop(a, g, items, npre, rate, barriers):
    NT, NF, KS, R, WB = g["NT"], g["NF"], g["KS"], g["R"], g["WB"]
    st = dict(pos=0, conf=-1, passed=-1); issued = []
    def can(i):
        t = items[i][0]
        return not (t[0] == "w" and t[1] >= R and st["passed"] < t[1] - R + 2)
    def issue1():
        i = st["pos"]
        if i >= len(items) or not can(i): return False
        if len(issued) - 1 - st["conf"] >= 62: return False
        a(items[i][1]); issued.append(items[i][0]); st["pos"] += 1; return True
    def need(tag):
        idxs = [i for i, it in enumerate(items) if it[0] == tag]
        if not idxs: return
        m = max(idxs)
        while st["pos"] <= m: assert issue1(), (tag, st)
        if m > st["conf"]:
            a(f"s_waitcnt vmcnt({len(issued) - 1 - m})"); st["conf"] = m
    def rd(ks):
        base = ((ks // 4) % R) * 4 * NF * 1024 + (ks % 4) * NF * 1024
        for f in range(NF):
            o = base + f * 1024
            a(f"ds_read_b128 {vr(WB + (ks % 2) * NF * 4 + f * 4, 4)}, v{2 + (o >> 16)} offset:{o & 0xffff}")
    for _ in range(npre): issue1()
    for i in range(NT * NF * 4): a(f"v_mov_b32 v{16+i}, 0")
    a("v_add_u32 v3, 0x10000, v2\nv_add_u32 v4, 0x20000, v2")
    if 0 in barriers: need(("w", 0)); a("s_barrier"); st["passed"] = 0
    rd(0)
    nm = NF * NT
    for ks in range(KS):
        s, kk = ks // 4, ks % 4
        if ks + 1 < KS:
            if kk == 3 and s + 1 in barriers: need(("w", s + 1)); a("s_barrier"); st["passed"] = s + 1
            rd(ks + 1)
        need(("x", ks))
        slots = [(j * nm) // rate for j in range(rate)]
        mi = 0
        for f in range(NF):
            a(f"s_waitcnt lgkmcnt({(NF if ks + 1 < KS else 0) + NF - 1 - f})")
            for n in range(NT):
                acc = 16 + (n * NF + f) * 4; x = (ks * NT + n) * 4; w = WB + (ks % 2) * NF * 4 + f * 4
                a(f"v_mfma_f32_16x16x32_bf16 {vr(acc,4)}, {vr(w,4)}, a[{x}:{x+3}], {vr(acc,4)}")
                for _ in range(slots.count(mi)): issue1()
                mi += 1
    assert st["pos"] == len(items)
    a("s_nop 7")
def pk_off(a):
    a(f"s_mul_i32 s39, s22, 5\ns_lshr_b32 s39, s39, 1\ns_lshl_b32 s39, s39, 10\ns_mul_i32 s38, s24, 20480\ns_add_u32 s39, s39, s38")
def g1(a):
    g = G1; setup(a, g)
    items = []
    for s in range(5): items += w_items(g, s) + x_items(g, s)
    gemm_loop(a, g, items, 27, 3, set(range(5)))
    a(f"s_mov_b32 s40, {f2u(GC1)}\nv_mov_b32 v5, {f2u(GC0)}")
    gelu(a, list(range(16, 36)), 40, 5, 40)
    a("s_lshr_b32 s36, s22, 1\ns_lshr_b32 s37, s36, 1\ns_add_u32 s37, s37, 1\ns_sub_u32 s38, 0, s37\ns_bitcmp1_b32 s36, 0\ns_cselect_b32 s37, s38, s37")
    a("s_lshl_b32 s38, s24, 4\ns_add_u32 s38, s38, s37")
    a("v_and_b32 v6, 15, v1\nv_add_u32 v6, s38, v6\nv_cmp_gt_u32 vcc, 0x800, v6\nv_and_b32 v6, 0x7ff, v6")
    a("v_lshrrev_b32 v7, 4, v6\nv_mul_u32_u24 v7, 20480, v7\nv_and_b32 v6, 15, v6\nv_lshl_add_u32 v7, v6, 4, v7")
    a("v_lshrrev_b32 v6, 4, v1\nv_lshl_add_u32 v7, v6, 8, v7")
    for i in range(10): a(f"v_cvt_pk_bf16_f32 v{40+i}, v{16+2*i}, v{17+2*i}\nv_cndmask_b32 v{40+i}, 0, v{40+i}, vcc")
    a(f"s_mul_i32 s39, s22, 5\ns_lshr_b32 s39, s39, 1\ns_lshl_b32 s39, s39, 10\ns_add_u32 s39, s39, {HS_P}")
    by_parity(a, lambda p: packed_io5(a, "store", 40, 7, 39, p))
XNR, X1R, XR = 136, 146, 156
def g2_pre(a):
    setup(a, G2); pk_off(a)
    a(f"s_add_u32 s38, s39, {XN_P}")
    by_parity(a, lambda p: packed_io5(a, "load", XNR, 2, 38, p))
def g2(a):
    g = G2; setup(a, g)
    items = []
    for s in range(5): items += x_items(g, s)
    gemm_loop(a, g, items, 10, 1, set())
    pk_off(a); a(f"s_add_u32 s39, s39, {X1_P}")
    unpack(a, 40, XNR, 10)
    for i in range(20): a(f"v_add_f32 v{16+i}, v{16+i}, v{40+i}")
    for i in range(10): a(f"v_cvt_pk_bf16_f32 v{X1R+i}, v{16+2*i}, v{17+2*i}")
    by_parity(a, lambda p: packed_io5(a, "store", X1R, 2, 39, p))
    unpack(a, 16, X1R, 10)
    a("v_add_f32 v40, v16, v17\nv_mul_f32 v41, v16, v16\nv_fmac_f32 v41, v17, v17")
    for i in range(2, 20): a(f"v_add_f32 v40, v40, v{16+i}\nv_fmac_f32 v41, v{16+i}, v{16+i}")
    a("v_xor_b32 v44, 32, v1\nv_lshlrev_b32 v44, 2, v44")
    xsum_q(a, [40, 41], 42, 44)
    a(f"v_lshlrev_b32 v44, 3, v1\ns_lshl_b32 s36, s24, 10\ns_lshl_b32 s37, s22, 7\ns_add_u32 s36, s36, s37\ns_add_u32 s36, s36, {ST2}")
    a("s_mov_b64 exec, 0xffff\nbuffer_store_dwordx2 v[40:41], v44, s[4:7], s36 offen sc1\ns_mov_b64 exec, -1")
def colsum_loader(a):
    g = G3; setup(a, g)
    for i in range(24): a(f"v_mov_b32 v{16+i}, 0")
    for i in range(4): a(f"v_mov_b32 v{8+i}, 0x3f803f80")
    a("v_add_u32 v3, 0x10000, v2")
    def dma(i):
        if i % 4 == 0: a(f"s_mov_b32 m0, {i*1024}\ns_add_u32 s33, s27, {i*1024}")
        a(f"buffer_load_dwordx4 v2, s[4:7], s33 offen offset:{(i % 4)*1024} sc1 lds")
    LAG = 8
    for i in range(6 * LAG): dma(i)
    for ks in range(20):
        a(f"s_waitcnt vmcnt({6 * (min(ks + LAG, 20) - ks - 1)})")
        for f in range(6):
            o = (ks * 6 + f) * 1024
            a(f"ds_read_b128 {vr(64+4*f,4)}, v{2 + (o >> 16)} offset:{o & 0xffff}")
        if ks + LAG < 20:
            for i in range(6): dma((ks + LAG) * 6 + i)
        for f in range(6): a(f"s_waitcnt lgkmcnt({5-f})\nv_mfma_f32_16x16x32_bf16 {vr(16+4*f,4)}, {vr(64+4*f,4)}, v[8:11], {vr(16+4*f,4)}")
    a(f"v_and_b32 v5, 48, v1\nv_add_u32 v5, {CSL}, v5\ns_nop 6\ns_mov_b32 exec_lo, 0x10001\ns_mov_b32 exec_hi, 0x10001")
    for f in range(6): a(f"ds_write_b128 v5, {vr(16+4*f,4)} offset:{64*f}")
    a("s_mov_b64 exec, -1\ns_waitcnt lgkmcnt(0)")
def g3(a):
    g = G3; setup(a, g)
    a("v_and_b32 v5, 15, v1\nv_lshrrev_b32 v6, 4, v1\nv_lshlrev_b32 v6, 8, v6\nv_lshl_add_u32 v5, v5, 3, v6")
    a(f"s_lshl_b32 s37, s24, 10\ns_add_u32 s37, s37, {ST2}")
    items = []
    for s in range(5):
        items += x_items(g, s)
        if s == 1:
            for n in range(2):
                for h in range(2): items.append((("e", 0), f"buffer_load_dwordx2 v[{8+4*n+2*h}:{9+4*n+2*h}], v5, s[4:7], s37 offen offset:{1024*n + 128*h} sc1"))
    gemm_loop(a, g, items, 12, 2, set())
    a(f"v_and_b32 v5, 48, v1\nv_add_u32 v5, {CSL}, v5")
    for f in range(6): a(f"ds_read_b128 {vr(112+4*f,4)}, v5 offset:{64*f}")
    a("v_add_f32 v8, v8, v10\nv_add_f32 v9, v9, v11\nv_add_f32 v10, v12, v14\nv_add_f32 v11, v13, v15")
    a("v_xor_b32 v7, 32, v1\nv_lshlrev_b32 v7, 2, v7")
    xsum_q(a, [8, 9, 10, 11], 12, 7)
    for n in range(2):
        m, v = 8 + 2*n, 9 + 2*n
        a(f"v_mul_f32 v{m}, {f2u(1/640)}, v{m}\nv_mul_f32 v{v}, {f2u(1/640)}, v{v}\nv_fma_f32 v{v}, -v{m}, v{m}, v{v}\nv_max_f32 v{v}, 0, v{v}")
        rbf(a, m); rbf(a, v)
        a(f"v_add_f32 v{v}, {f2u(1e-5)}, v{v}"); rbf(a, v)
        a(f"v_sqrt_f32 v{v}, v{v}\ns_nop 0"); rbf(a, v)
        a(f"v_rcp_f32 v{v}, v{v}\ns_nop 0")
    a(f"s_mov_b32 s40, {f2u(GC1)}\nv_mov_b32 v5, {f2u(GC0)}")
    a(f"s_mul_i32 s38, s24, {48*1024}\ns_mul_i32 s39, s45, 3072\ns_add_u32 s38, s38, s39\ns_add_u32 s38, s38, {G_P}\ns_add_u32 s39, s38, {48*1024}")
    for n in range(2):
        for p in range(3):
            b = 16 + 24 * n + 8 * p
            for i in range(8): a(f"v_fma_f32 v{b+i}, -v{8+2*n}, v{112+8*p+i}, v{b+i}")
            for i in range(8): a(f"v_mul_f32 v{b+i}, v{b+i}, v{9+2*n}")
            gelu(a, list(range(b, b + 8)), 64, 5, 40)
            o = 88 + 12 * n + 4 * p
            for i in range(4): a(f"v_cvt_pk_bf16_f32 v{o+i}, v{b+2*i}, v{b+2*i+1}")
            a(f"buffer_store_dwordx4 {vr(o,4)}, v2, s[4:7], s{38+n} offen offset:{1024*p} sc1")
def g4_pre(a):
    g = G4; setup(a, g)
    srd(a, 8, P_Q, ACT); srd(a, 12, P_OUT, ACT)
    a("v_lshrrev_b32 v5, 3, v1\nv_and_b32 v6, 7, v1\nv_lshlrev_b32 v5, 12, v5\nv_lshl_add_u32 v5, v6, 4, v5")
    a(f"s_mul_i32 s36, s22, 80\ns_mul_i32 s37, s30, 24\ns_add_u32 s36, s36, s37\ns_lshl_b32 s36, s36, 12\ns_lshl_b32 s37, s21, 7\ns_add_u32 s36, s36, s37\ns_add_u32 s36, s36, {YT}")
    a(f"s_mul_i32 s37, s30, 3072\ns_add_u32 s37, s37, {YL}")
    for s in range(7):
        for t, txt in w_items(g, s): a(txt)
    for i in range(3):
        a(f"s_add_u32 m0, s37, {1024*i}\ns_nop 0\nbuffer_load_dwordx4 v5, s[4:7], s36 offen sc1 lds\ns_add_u32 s36, s36, 32768")
    a("s_mul_i32 s41, s24, 20480\ns_mul_i32 s42, s22, 160\ns_add_u32 s41, s41, s42\ns_mul_i32 s43, s30, 5376")
    for i in range(3):
        a(f"v_add_u32 v5, {64*i}, v1\nv_mul_u32_u24 v6, 6554, v5\nv_lshrrev_b32 v6, 16, v6\nv_mul_u32_u24 v7, 10, v6\nv_sub_u32 v7, v5, v7")
        a(f"v_mul_u32_u24 v{8+i}, 1280, v6\nv_lshl_add_u32 v{8+i}, v7, 4, v{8+i}")
        a(f"v_mul_u32_u24 v{168+i}, 336, v6\nv_lshl_add_u32 v{168+i}, v7, 5, v{168+i}\nv_add_u32 v{168+i}, s43, v{168+i}")
        if i == 2: a("v_mov_b32 v7, 0x7fff0000\nv_cmp_gt_u32 vcc, 32, v1\ns_nop 1\nv_cndmask_b32 v10, v7, v10, vcc")
        a(f"buffer_load_dwordx4 {vr(XR+4*i,4)}, v{8+i}, s[8:11], s41 offen")
def g4(a):
    g = G4
    X = lambda s: x_items(g, s)
    W = lambda s: w_items(g, s)
    items = X(0) + X(1) + X(2) + X(3) + X(4) + X(5) + W(7) + X(6) + W(8) + X(7) + W(9) + X(8) + W(10) + X(9) + W(11) + X(10) + X(11)
    gemm_loop(a, g, items, 12, 3, set(range(2, 12)))
    a(f"v_lshrrev_b32 v5, 2, v1\nv_and_b32 v6, 3, v1\nv_lshlrev_b32 v5, 7, v5\nv_lshl_add_u32 v5, v6, 3, v5\ns_lshl_b32 s36, s30, 5\ns_add_u32 s36, s36, {YL}\nv_add_u32 v5, s36, v5")
    for f_ in range(5): a(f"ds_read_b64_tr_b16 v[{40+2*f_}:{41+2*f_}], v5 offset:{2048*f_}")
    unpack(a, 76, XNR, 10); unpack(a, 96, X1R, 10)
    a("s_waitcnt lgkmcnt(0)")
    unpack(a, 116, 40, 10)
    for i in range(20): a(f"v_add_f32 v{16+i}, v{16+i}, v{96+i}\nv_fmac_f32 v{16+i}, v{76+i}, v{116+i}")
    a("v_and_b32 v5, 15, v1\nv_lshrrev_b32 v6, 4, v1\nv_mul_u32_u24 v5, 336, v5\nv_lshl_add_u32 v5, v6, 4, v5\nv_add_u32 v5, s43, v5")
    for f_ in range(5): a(f"ds_write_b128 v5, {vr(16+4*f_,4)} offset:{64*f_}")
    unpack(a, 76, XR, 12)
    a("s_waitcnt lgkmcnt(0)")
    for i in range(3): a(f"ds_read_b128 {vr(40+8*i,4)}, v{168+i}\nds_read_b128 {vr(44+8*i,4)}, v{168+i} offset:16")
    for i in range(3):
        a(f"s_waitcnt lgkmcnt({4-2*i})")
        for j in range(8): a(f"v_add_f32 v{40+8*i+j}, v{40+8*i+j}, v{76+8*i+j}")
        for j in range(4): a(f"v_cvt_pk_bf16_f32 v{16+4*i+j}, v{40+8*i+2*j}, v{41+8*i+2*j}")
        a(f"buffer_store_dwordx4 {vr(16+4*i,4)}, v{8+i}, s[12:15], s41 offen")
```

```python
from common import *
N_LN, N_KV, N_W = 128, 320, 170
def ln_stats(a, src, n, vm, vs, d):
    a(f"v_add_f32 v{vm}, v{src}, v{src+1}\nv_add_f32 v{vs}, v{src+2}, v{src+3}")
    for i in range(4, n, 2): a(f"v_add_f32 v{vm}, v{vm}, v{src+i}\nv_add_f32 v{vs}, v{vs}, v{src+i+1}")
    a(f"v_add_f32 v{vm}, v{vm}, v{vs}")
    rowsum16(a, vm, None)
    a(f"v_mul_f32 v{vm}, {f2u(1/640)}, v{vm}")
    for i in range(n): a(f"v_sub_f32 v{d+i}, v{src+i}, v{vm}")
    a(f"v_mul_f32 v{vs}, v{d}, v{d}\nv_mul_f32 v{vs+1}, v{d+1}, v{d+1}")
    for i in range(2, n, 2): a(f"v_fmac_f32 v{vs}, v{d+i}, v{d+i}\nv_fmac_f32 v{vs+1}, v{d+i+1}, v{d+i+1}")
    a(f"v_add_f32 v{vs}, v{vs}, v{vs+1}")
    rowsum16(a, vs, None)
    a(f"v_mul_f32 v{vs}, {f2u(1/640)}, v{vs}")
    rbf(a, vm); rbf(a, vs)
    a(f"v_add_f32 v{vs}, {f2u(1e-5)}, v{vs}"); rbf(a, vs)
    a(f"v_sqrt_f32 v{vs}, v{vs}\ns_nop 0"); rbf(a, vs)
    a(f"v_rcp_f32 v{vs}, v{vs}")
    for i in range(0, n, 2):
        a(f"v_sub_f32 v{d+i}, v{src+i}, v{vm}\nv_sub_f32 v{d+i+1}, v{src+i+1}, v{vm}")
        a(f"v_cvt_pk_bf16_f32 v{d+i}, v{d+i}, v{d+i+1}")
        a(f"v_and_b32 v{d+i+1}, 0xffff0000, v{d+i}\nv_lshlrev_b32 v{d+i}, 16, v{d+i}")
        a(f"v_mul_f32 v{d+i}, v{d+i}, v{vs}\nv_mul_f32 v{d+i+1}, v{d+i+1}, v{vs}")

def task_ln(a, sid):
    a("v_lshrrev_b32 v1, 4, v0\nv_and_b32 v2, 3, v0\nv_bfe_u32 v3, v0, 2, 2")
    a("v_mul_u32_u24 v4, 1280, v1\nv_lshl_add_u32 v4, v3, 6, v4\nv_lshl_add_u32 v4, v2, 3, v4")
    a(f"s_mul_i32 s20, s{sid}, 20480")
    for c in range(5):
        a(f"buffer_load_dwordx2 v[{10+4*c}:{11+4*c}], v4, s[8:11], s20 offen offset:{256*c}")
        a(f"buffer_load_dwordx2 v[{12+4*c}:{13+4*c}], v4, s[8:11], s20 offen offset:{256*c+32}")
    a("v_lshlrev_b32 v5, 4, v1\nv_lshl_add_u32 v5, v2, 8, v5\nv_lshl_add_u32 v5, v3, 10, v5")
    a("s_waitcnt vmcnt(0)")
    for i in range(20): a(f"v_lshlrev_b32 v{32+2*i}, 16, v{10+i}\nv_and_b32 v{33+2*i}, 0xffff0000, v{10+i}")
    ln_stats(a, 32, 40, 6, 8, 72)
    for i in range(20): a(f"v_cvt_pk_bf16_f32 v{10+i}, v{72+2*i}, v{73+2*i}")
    for c in range(5):
        a(f"s_add_u32 s21, s20, {XN_P + 4096*c}\nbuffer_store_dwordx4 {vr(10+4*c,4)}, v5, s[4:7], s21 offen")
    for i in range(20): a(f"v_lshlrev_b32 v{32+2*i}, 16, v{10+i}\nv_and_b32 v{33+2*i}, 0xffff0000, v{10+i}")
    ln_stats(a, 32, 40, 6, 8, 72)
    for i in range(20): a(f"v_cvt_pk_bf16_f32 v{32+i}, v{72+2*i}, v{73+2*i}")
    for c in range(5):
        a(f"s_add_u32 s21, s20, {A1_P + 4096*c}\nbuffer_store_dwordx4 {vr(32+4*c,4)}, v5, s[4:7], s21 offen")

def task_kv(a, sid):
    a(f"s_mul_i32 s20, s{sid}, 6554\ns_lshr_b32 s20, s20, 16\ns_mul_i32 s21, s20, 10\ns_sub_u32 s21, s{sid}, s21")
    a("v_and_b32 v1, 31, v0\nv_lshrrev_b32 v2, 5, v0")
    a("s_lshl_b32 s22, s20, 6\ns_lshl_b32 s23, s21, 7")
    a("v_lshl_add_u32 v3, v2, 3, s22")
    a("v_mul_u32_u24 v4, 1280, v3\nv_lshl_add_u32 v4, v1, 2, v4\nv_add_u32 v4, s23, v4")
    a("v_subrev_u32 v5, 3840, v4\nv_cmp_eq_u32 vcc, 0, v3\nv_mov_b32 v6, 0x7fff0000\ns_nop 1\nv_cndmask_b32 v5, v5, v6, vcc")
    a("s_lshl_b32 s24, s21, 9\nv_lshlrev_b32 v7, 4, v1\ns_movk_i32 s25, 5120")
    a("buffer_load_dwordx4 v[8:11], v7, s[16:19], s24 offen")
    for r in range(3): a(f"buffer_load_dword v{12+r}, v5, s[8:11], 0 offen offset:{1280*r}")
    for r in range(8): a(f"buffer_load_dword v{15+r}, v4, s[8:11], {'0' if r < 4 else 's25'} offen offset:{1280*(r%4)}")
    for r in range(8): a(f"buffer_load_dword v{23+r}, v4, s[12:15], {'0' if r < 4 else 's25'} offen offset:{1280*(r%4)}")
    a("v_sub_u32 v6, 2040, v3\nv_lshlrev_b32 v6, 1, v6\nv_lshl_add_u32 v6, v1, 13, v6")
    a(f"s_lshl_b32 s26, s21, 18\ns_add_u32 s26, s26, {KVT}\ns_add_u32 s27, s26, 4096")
    a("s_waitcnt vmcnt(8)")
    for c in range(2):
        for h in range(2): a(f"v_lshlrev_b32 v{32+4*c+2*h}, 16, v{8+2*c+h}\nv_and_b32 v{33+4*c+2*h}, 0xffff0000, v{8+2*c+h}")
    for r in range(11): a(f"v_lshlrev_b32 v{40+r}, 16, v{12+r}\nv_and_b32 v{52+r}, 0xffff0000, v{12+r}")
    for c in range(2):
        kb = 40 + 12 * c
        for i in range(8):
            d = 64 + 8 * c + i
            a(f"v_mul_f32 v{d}, v{kb+i}, v{32+4*c+3}")
            for j in (2, 1, 0): a(f"v_fmac_f32 v{d}, v{kb+i+3-j}, v{32+4*c+j}")
    a("s_waitcnt vmcnt(0)")
    for i in range(8):
        a(f"v_cvt_pk_bf16_f32 v31, v{64+i}, v{72+i}\nv_lshlrev_b32 v{64+i}, 16, v31\nv_and_b32 v{72+i}, 0xffff0000, v31")
        a(f"v_lshlrev_b32 v31, 16, v{23+i}\nv_mul_f32 v{64+i}, v{64+i}, v31\nv_and_b32 v31, 0xffff0000, v{23+i}\nv_mul_f32 v{72+i}, v{72+i}, v31")
    for c in range(2):
        for d in range(4): a(f"v_cvt_pk_bf16_f32 v{40+4*c+d}, v{64+8*c+7-2*d}, v{64+8*c+6-2*d}")
    a("buffer_store_dwordx4 v[40:43], v6, s[4:7], s26 offen\nbuffer_store_dwordx4 v[44:47], v6, s[4:7], s27 offen")

def task_w(a, sid, lab):
    mats = [(0, 40, 1280, 10, 5, 20, W1_P, 640*1280), (25, 42, 1280, 10, 5, 20, W2_P, 640*1280),
            (50, 44, 3072, 24, 6, 20, W3_P, 640*3072), (110, 46, 1280, 10, 5, 48, W4_P, 1536*1280)]
    for mi, (st, p, rs, ncb, ns, ks, dst, nb) in enumerate(mats):
        if mi < 3: a(f"s_cmp_ge_u32 s{sid}, {mats[mi+1][0]}\ns_cbranch_scc1 {lab}_m{mi+1}")
        srd(a, 8, p, nb)
        a(f"s_sub_u32 s20, s{sid}, {st}\ns_movk_i32 s21, {rs}\ns_movk_i32 s22, {ncb}\ns_mov_b32 s23, {(65536 + ncb - 1)//ncb}")
        a(f"s_movk_i32 s24, {ns}\ns_mov_b32 s25, {(65536 + ns - 1)//ns}\ns_movk_i32 s26, {ks}\ns_mov_b32 s27, {dst}")
        if mi < 3: a(f"s_branch {lab}_go\n{lab}_m{mi+1}:")
    a(f"{lab}_go:")
    a("s_lshl_b32 s20, s20, 2\ns_add_u32 s20, s20, s30")
    a("s_mul_i32 s28, s20, s23\ns_lshr_b32 s28, s28, 16\ns_mul_i32 s29, s28, s22\ns_sub_u32 s29, s20, s29")
    a("v_and_b32 v1, 63, v0\nv_lshrrev_b32 v2, 3, v1\nv_and_b32 v3, 7, v1\nv_mul_lo_u32 v2, v2, s21\nv_lshl_add_u32 v2, v3, 4, v2")
    a("s_mul_i32 s31, s28, s21\ns_lshl_b32 s31, s31, 6\ns_lshl_b32 s32, s29, 7\ns_add_u32 s31, s31, s32\ns_lshl_b32 s32, s21, 3")
    a("s_lshl_b32 s33, s30, 13")
    for i in range(8):
        a(f"s_add_u32 m0, s33, {1024*i}\ns_nop 0\nbuffer_load_dwordx4 v2, s[8:11], s31 offen lds\ns_add_u32 s31, s31, s32")
    a("v_lshrrev_b32 v4, 2, v1\nv_and_b32 v5, 3, v1\nv_lshlrev_b32 v4, 7, v4\nv_lshl_add_u32 v4, v5, 3, v4\nv_add_u32 v4, s33, v4")
    a("v_lshlrev_b32 v6, 4, v1")
    a("s_waitcnt vmcnt(0)")
    for kl in range(2):
        for i in range(4):
            for h in range(2):
                r = 8 + 16*kl + 4*i + 2*h
                a(f"ds_read_b64_tr_b16 v[{r}:{r+1}], v4 offset:{kl*4096 + h*2048 + i*32}")
    for i in range(4):
        a(f"s_lshl_b32 s34, s29, 2\ns_add_u32 s34, s34, {i}\ns_mul_i32 s35, s34, s25\ns_lshr_b32 s35, s35, 16\ns_mul_i32 s36, s35, s24\ns_sub_u32 s36, s34, s36")
        a(f"s_mul_i32 s35, s35, s26\ns_lshl_b32 s37, s28, 1\ns_add_u32 s35, s35, s37\ns_mul_i32 s35, s35, s24\ns_add_u32 s35, s35, s36")
        a(f"s_lshl_b32 s35, s35, 10\ns_add_u32 s{50+i}, s35, s27\ns_lshl_b32 s35, s24, 10\ns_add_u32 s{54+i}, s{50+i}, s35")
    a("s_waitcnt lgkmcnt(0)")
    for kl in range(2):
        for i in range(4): a(f"buffer_store_dwordx4 {vr(8+16*kl+4*i,4)}, v6, s[4:7], s{50+4*kl+i} offen")

def prep_kernel():
    a = Asm()
    a(f"s_cmp_ge_u32 s2, {N_LN+N_KV+N_W}\ns_cbranch_scc1 P_end")
    stamp(a, 0)
    a("s_load_dwordx8 s[32:39], s[0:1], 0\ns_load_dwordx8 s[40:47], s[0:1], 56\ns_load_dwordx2 s[48:49], s[0:1], 104")
    a("v_lshrrev_b32 v1, 6, v0\ns_nop 1\nv_readfirstlane_b32 s30, v1\ns_waitcnt lgkmcnt(0)")
    srd(a, 4, 48, WS_BYTES)
    a(f"s_cmp_ge_u32 s2, {N_W}\ns_cbranch_scc1 P_notw")
    task_w(a, 2, "PW"); flush(a, 0, [0])
    a("s_endpgm\nP_notw:")
    a(f"s_sub_u32 s3, s2, {N_W}\ns_cmp_ge_u32 s3, {N_LN}\ns_cbranch_scc1 P_kv")
    srd(a, 8, 32, ACT)
    task_ln(a, 3); flush(a, 5, [0])
    a(f"s_endpgm\nP_kv:\ns_sub_u32 s3, s3, {N_LN}")
    srd(a, 8, 34, ACT); srd(a, 12, 36, ACT); srd(a, 16, 38, 5120)
    task_kv(a, 3); flush(a, 6, [0])
    a("P_end:\ns_endpgm")
    return a.text()
```

```python
from common import *
from prep import ln_stats as _old
XNL, A1L, KVL = 32768, 43008, 53248
def rowsum32(a, v, t):
    rowsum16(a, v, None)
    a(f"ds_swizzle_b32 v{t}, v{v} offset:0x401F\ns_waitcnt lgkmcnt(0)\nv_add_f32 v{v}, v{v}, v{t}")
def ln_stats(a, src, n, vm, vs, d):
    a(f"v_add_f32 v{vm}, v{src}, v{src+1}\nv_add_f32 v{vs}, v{src+2}, v{src+3}")
    for i in range(4, n, 2): a(f"v_add_f32 v{vm}, v{vm}, v{src+i}\nv_add_f32 v{vs}, v{vs}, v{src+i+1}")
    a(f"v_add_f32 v{vm}, v{vm}, v{vs}")
    rowsum32(a, vm, vs)
    a(f"v_mul_f32 v{vm}, {f2u(1/640)}, v{vm}")
    for i in range(n): a(f"v_sub_f32 v{d+i}, v{src+i}, v{vm}")
    a(f"v_mul_f32 v{vs}, v{d}, v{d}\nv_mul_f32 v{vs+1}, v{d+1}, v{d+1}")
    for i in range(2, n, 2): a(f"v_fmac_f32 v{vs}, v{d+i}, v{d+i}\nv_fmac_f32 v{vs+1}, v{d+i+1}, v{d+i+1}")
    a(f"v_add_f32 v{vs}, v{vs}, v{vs+1}")
    rowsum32(a, vs, vs + 1)
    a(f"v_mul_f32 v{vs}, {f2u(1/640)}, v{vs}")
    rbf(a, vm); rbf(a, vs)
    a(f"v_add_f32 v{vs}, {f2u(1e-5)}, v{vs}"); rbf(a, vs)
    a(f"v_sqrt_f32 v{vs}, v{vs}\ns_nop 0"); rbf(a, vs)
    a(f"v_rcp_f32 v{vs}, v{vs}")
    for i in range(0, n, 2):
        a(f"v_sub_f32 v{d+i}, v{src+i}, v{vm}\nv_sub_f32 v{d+i+1}, v{src+i+1}, v{vm}")
        a(f"v_cvt_pk_bf16_f32 v{d+i}, v{d+i}, v{d+i+1}")
        a(f"v_and_b32 v{d+i+1}, 0xffff0000, v{d+i}\nv_lshlrev_b32 v{d+i}, 16, v{d+i}")
        a(f"v_mul_f32 v{d+i}, v{d+i}, v{vs}\nv_mul_f32 v{d+i+1}, v{d+i+1}, v{vs}")

MATS = [(0, P_W1, 1280, 10, 5, 20, W1_P, 640*1280), (200, P_W2, 1280, 10, 5, 20, W2_P, 640*1280),
        (400, P_W3, 3072, 24, 6, 20, W3_P, 640*3072), (880, P_W4, 1280, 10, 5, 48, W4_P, 1536*1280)]
def w_issue(a, slot):
    L = lab("W")
    mats = MATS if slot == 0 else MATS[3:]
    for mi, (st, p, rs, ncb, ns, ks, dst, nb) in enumerate(mats):
        last = mi == len(mats) - 1
        if not last: a(f"s_cmp_ge_u32 s20, {mats[mi+1][0]}\ns_cbranch_scc1 {L}_m{mi+1}")
        srd(a, 8, p, nb)
        a(f"s_sub_u32 s20, s20, {st}\ns_movk_i32 s23, {rs}\ns_movk_i32 s24, {ncb}\ns_mov_b32 s25, {(65536 + ncb - 1)//ncb}")
        a(f"s_movk_i32 s26, {ns}\ns_mov_b32 s27, {(65536 + ns - 1)//ns}\ns_movk_i32 s28, {ks}\ns_mov_b32 s29, {dst}")
        if not last: a(f"s_branch {L}_go\n{L}_m{mi+1}:")
    a(f"{L}_go:")
    a("s_mul_i32 s40, s20, s25\ns_lshr_b32 s40, s40, 16\ns_mul_i32 s41, s40, s24\ns_sub_u32 s41, s20, s41")
    a("v_lshrrev_b32 v3, 3, v1\nv_and_b32 v4, 7, v1\nv_mul_lo_u32 v3, v3, s23\nv_lshl_add_u32 v3, v4, 4, v3")
    a("s_mul_i32 s42, s40, s23\ns_lshl_b32 s42, s42, 5\ns_lshl_b32 s43, s41, 7\ns_add_u32 s42, s42, s43\ns_lshl_b32 s43, s23, 3\ns_lshl_b32 s20, s30, 13")
    for i in range(4):
        a(f"s_add_u32 m0, s20, {4096*slot + 1024*i}\ns_nop 0\nbuffer_load_dwordx4 v3, s[8:11], s42 offen lds\ns_add_u32 s42, s42, s43")
    for i in range(4):
        a(f"s_lshl_b32 s42, s41, 2\ns_add_u32 s42, s42, {i}\ns_mul_i32 s43, s42, s27\ns_lshr_b32 s43, s43, 16\ns_mul_i32 s20, s43, s26\ns_sub_u32 s20, s42, s20")
        a(f"s_mul_i32 s43, s43, s28\ns_add_u32 s43, s43, s40\ns_mul_i32 s43, s43, s26\ns_add_u32 s43, s43, s20\ns_lshl_b32 s43, s43, 10\ns_add_u32 s{32+4*slot+i}, s43, s29")
def w_finish(a, slot, t):
    a(f"v_lshrrev_b32 v3, 2, v1\nv_and_b32 v4, 3, v1\nv_lshlrev_b32 v3, 7, v3\nv_lshl_add_u32 v3, v4, 3, v3\ns_lshl_b32 s20, s30, 13\nv_add_u32 v3, s20, v3")
    for i in range(4):
        for h in range(2): a(f"ds_read_b64_tr_b16 v[{t+4*i+2*h}:{t+4*i+2*h+1}], v3 offset:{slot*4096 + h*2048 + i*32}")
    a("s_waitcnt lgkmcnt(0)")
    for i in range(4): a(f"buffer_store_dwordx4 {vr(t+4*i,4)}, v2, s[4:7], s{32+4*slot+i} offen sc1")

KR, VR, SKR = 100, 120, 136
def issue_x(a):
    srd(a, 8, P_Q, ACT)
    a("v_lshrrev_b32 v3, 5, v0\nv_and_b32 v4, 31, v0\nv_mul_u32_u24 v3, 1280, v3\nv_lshl_add_u32 v3, v4, 3, v3")
    a("s_lshl_b32 s20, s21, 3\ns_add_u32 s20, s20, s22\ns_mul_i32 s20, s20, 10240")
    for j in range(5): a(f"buffer_load_dwordx2 v[{20+2*j}:{21+2*j}], v3, s[8:11], s20 offen offset:{256*j}")
def issue_kv(a):
    srd(a, 12, P_K, ACT); srd(a, 16, P_V, ACT); srd(a, 8, P_SK, 5120)
    a("s_mul_i32 s20, s22, 640\nbuffer_load_dwordx4 %s, v2, s[8:11], s20 offen" % vr(SKR, 4))
    a("v_mov_b32 v5, 0x7fff0000\nv_lshlrev_b32 v4, 2, v1\nv_cmp_gt_u32 vcc, 40, v1\ns_lshl_b32 s20, s21, 2\ns_add_u32 s20, s20, s30\nv_cndmask_b32 v4, v5, v4, vcc")
    a("s_mul_i32 s23, s20, 20480\ns_mul_i32 s24, s22, 160\ns_add_u32 s23, s23, s24")
    a("s_sub_u32 s24, s23, 3840\ns_cmp_eq_u32 s20, 0\ns_cselect_b32 s24, 0, s24\ns_cselect_b32 s25, 0x7fff0000, 0\nv_max_u32 v5, s25, v4")
    for r in range(3): a(f"buffer_load_dword v{KR+r}, v5, s[12:15], s24 offen offset:{1280*r}")
    for g in range(4):
        for r in range(4): a(f"buffer_load_dword v{KR+3+4*g+r}, v4, s[12:15], s23 offen offset:{1280*r}")
        for r in range(4): a(f"buffer_load_dword v{VR+4*g+r}, v4, s[16:19], s23 offen offset:{1280*r}")
        a("s_add_u32 s23, s23, 5120")
def do_ln(a):
    for i in range(10): a(f"v_lshlrev_b32 v{32+2*i}, 16, v{20+i}\nv_and_b32 v{33+2*i}, 0xffff0000, v{20+i}")
    a("v_bfe_u32 v3, v0, 3, 2\nv_and_b32 v4, 3, v0\nv_lshlrev_b32 v3, 9, v3\nv_lshl_add_u32 v3, v4, 7, v3\nv_lshrrev_b32 v4, 5, v0\nv_lshl_add_u32 v3, v4, 4, v3\nv_bfe_u32 v4, v0, 2, 1\nv_lshl_add_u32 v3, v4, 3, v3")
    ln_stats(a, 32, 20, 6, 8, 52)
    for i in range(10): a(f"v_cvt_pk_bf16_f32 v{20+i}, v{52+2*i}, v{53+2*i}")
    for j in range(5): a(f"ds_write_b64 v3, v[{20+2*j}:{21+2*j}] offset:{XNL + 2048*j}")
    for i in range(10): a(f"v_lshlrev_b32 v{32+2*i}, 16, v{20+i}\nv_and_b32 v{33+2*i}, 0xffff0000, v{20+i}")
    ln_stats(a, 32, 20, 6, 8, 52)
    for i in range(10): a(f"v_cvt_pk_bf16_f32 v{32+i}, v{52+2*i}, v{53+2*i}")
    for j in range(5): a(f"ds_write_b64 v3, v[{32+2*j}:{33+2*j}] offset:{A1L + 2048*j}")
def store_ln(a):
    a("v_lshlrev_b32 v3, 4, v0\nv_lshrrev_b32 v4, 3, v0\nv_and_b32 v5, 7, v0\nv_lshlrev_b32 v4, 8, v4\nv_lshl_add_u32 v4, v5, 4, v4")
    for i in range(5): a(f"ds_read_b128 {vr(20+4*i,4)}, v3 offset:{XNL + 4096*i}")
    a("s_lshl_b32 s20, s21, 2\ns_lshr_b32 s23, s22, 1\ns_add_u32 s20, s20, s23\ns_mul_i32 s20, s20, 20480\ns_and_b32 s23, s22, 1\ns_lshl_b32 s23, s23, 7\ns_add_u32 s20, s20, s23")
    a(f"s_cmp_ge_u32 s30, 2\ns_cselect_b32 s24, {A1_P - 20480}, {XN_P}")
    for i in (3, 4, 2, 0, 1):
        if i == 2: a(f"s_add_u32 s23, s20, s24\ns_add_u32 s23, s23, {8192*i}")
        else: a(f"s_add_u32 s23, s20, {8192*i + (XN_P if i < 2 else A1_P - 20480)}")
        if i == 3: a("s_waitcnt lgkmcnt(0)")
        a(f"buffer_store_dwordx4 {vr(20+4*i,4)}, v4, s[4:7], s23 offen sc1")
def do_kv(a):
    for c in range(2):
        for h in range(2): a(f"v_lshlrev_b32 v{8+4*c+2*h}, 16, v{SKR+2*c+h}\nv_and_b32 v{9+4*c+2*h}, 0xffff0000, v{SKR+2*c+h}")
    for r in range(19): a(f"v_lshlrev_b32 v{20+r}, 16, v{KR+r}\nv_and_b32 v{40+r}, 0xffff0000, v{KR+r}")
    for c in range(2):
        for i in range(16):
            d = 60 + 16 * c + i; kb = 20 + 20 * c
            a(f"v_mul_f32 v{d}, v{kb+i}, v{8+4*c+3}")
            for j in (2, 1, 0): a(f"v_fmac_f32 v{d}, v{kb+i+3-j}, v{8+4*c+j}")
    for i in range(16):
        a(f"v_cvt_pk_bf16_f32 v16, v{60+i}, v{76+i}\nv_lshlrev_b32 v17, 16, v{VR+i}\nv_and_b32 v18, 0xffff0000, v{VR+i}")
        a(f"v_lshlrev_b32 v{60+i}, 16, v16\nv_and_b32 v{76+i}, 0xffff0000, v16\nv_mul_f32 v{60+i}, v{60+i}, v17\nv_mul_f32 v{76+i}, v{76+i}, v18")
    for c in range(2):
        for d in range(8): a(f"v_cvt_pk_bf16_f32 v{20+8*c+d}, v{60+16*c+15-2*d}, v{60+16*c+14-2*d}")
    a(f"s_lshl_b32 s20, s30, 5\ns_sub_u32 s20, {KVL + 96}, s20\nv_mul_u32_u24 v3, 288, v1\nv_add_u32 v3, s20, v3\ns_mov_b32 exec_hi, 0xff")
    for c in range(2):
        for h in range(2): a(f"ds_write_b128 v3, {vr(20+8*c+4*h,4)} offset:{144*c + 16*h}")
    a("s_mov_b32 exec_hi, -1")
def store_kv(a):
    l = lab("KV")
    a("v_lshrrev_b32 v4, 3, v0\nv_and_b32 v5, 7, v0\nv_lshlrev_b32 v5, 4, v5\nv_mul_u32_u24 v3, 144, v4\nv_add_u32 v3, v3, v5\nv_lshl_add_u32 v4, v4, 12, v5")
    for i in range(3): a(f"ds_read_b128 {vr(20+4*i,4)}, v3 offset:{KVL + 4608*i}")
    a(f"s_mul_i32 s20, s22, {80*4096}\ns_lshl_b32 s23, s21, 7\ns_sub_u32 s20, s20, s23\ns_add_u32 s20, s20, {KVT + 3968}\ns_waitcnt lgkmcnt(0)")
    for i in range(3):
        if i == 2: a(f"s_cmp_ge_u32 s30, 2\ns_cbranch_scc1 {l}")
        a(f"buffer_store_dwordx4 {vr(20+4*i,4)}, v4, s[4:7], s20 offen sc1\ns_add_u32 s20, s20, 131072")
    a(f"{l}:")
```

```python
import sys
from common import *
import common, prep2 as P, gemm2 as G, conv2 as C
NAME = "parallel_sum__ssm_conv_h3__mixer_s_mlp__prompt"
a = Asm()
a("s_cmp_ge_u32 s2, 256\ns_cbranch_scc1 L_end")
stamp(a, 0)
a("s_load_dwordx16 s[48:63], s[0:1], 0\ns_load_dwordx8 s[64:71], s[0:1], 64\ns_load_dwordx4 s[72:75], s[0:1], 96\ns_memrealtime s[40:41]")
a("v_lshrrev_b32 v1, 6, v0\ns_nop 1\nv_readfirstlane_b32 s30, v1\nv_and_b32 v1, 63, v0\nv_lshlrev_b32 v2, 4, v1")
a("s_and_b32 s20, s2, 7\ns_lshr_b32 s23, s2, 3\ns_lshr_b32 s21, s23, 3\ns_lshl_b32 s24, s20, 2\ns_add_u32 s21, s21, s24\ns_and_b32 s22, s23, 7")
a("s_lshr_b32 s44, s23, 4\ns_lshl_b32 s24, s20, 1\ns_add_u32 s44, s44, s24\ns_and_b32 s45, s23, 15\ns_waitcnt lgkmcnt(0)")
srd(a, 4, P_WS, WS_BYTES); srd(a, 16, P_DBG, 256); C.ids(a)
a("s_or_b32 s20, s2, s30\ns_cmp_lg_u32 s20, 0\ns_cbranch_scc1 L_notag\ns_or_b32 s40, s40, 1\nv_mov_b32 v3, s40\nv_mov_b32 v4, 0\ns_mov_b64 exec, 1")
a("buffer_store_dword v3, v4, s[16:19], 0 offen sc1\ns_mov_b64 exec, -1\nL_notag:")
P.issue_x(a)
a("s_lshl_b32 s20, s30, 8\ns_add_u32 s20, s20, s2"); P.w_issue(a, 0)
a("s_waitcnt vmcnt(4)"); P.do_ln(a)
a("v_mov_b32 v4, 0\ns_mov_b32 s47, 0x40000\nL_tag:\nbuffer_load_dword v5, v4, s[16:19], 0 offen sc1\ns_waitcnt vmcnt(0)\nv_readfirstlane_b32 s31, v5")
a("s_sub_u32 s47, s47, 1\ns_cmp_eq_u32 s47, 0\ns_cbranch_scc1 L_tagx\ns_cmp_eq_u32 s31, 0\ns_cbranch_scc1 L_tag\nL_tagx:")
a("s_cmp_lg_u32 s30, 0\ns_cbranch_scc1 L_a1"); P.w_finish(a, 0, 40); a("L_a1:\ns_waitcnt lgkmcnt(0)\ns_barrier")
P.store_ln(a)
a("s_lshl_b32 s20, s30, 8\ns_add_u32 s20, s20, s2\ns_add_u32 s20, s20, 1024\ns_min_u32 s20, s20, 1359"); P.w_issue(a, 1)
P.issue_kv(a)
b = Asm(); signal(b, f"s_lshl_b32 s20, s2, 2\ns_add_u32 s20, s20, {FA}"); a(b.text().replace("vmcnt(0)", "vmcnt(40)"))
stamp(a, 1)
C.skip(a, "L_b0"); C.issue_k(a); a("L_b0:")
a("s_cmp_eq_u32 s30, 0\ns_cbranch_scc1 L_b1"); P.w_finish(a, 0, 40); a("L_b1:\ns_waitcnt vmcnt(0)")
a("s_lshl_b32 s20, s30, 8\ns_add_u32 s20, s20, s2\ns_cmp_ge_u32 s20, 336\ns_cbranch_scc1 L_b2"); P.w_finish(a, 1, 140); a("L_b2:")
P.do_kv(a)
C.skip(a, "L_b3"); C.build(a); a("L_b3:\ns_waitcnt lgkmcnt(0)\ns_barrier")
P.store_kv(a)
signal(a, f"s_lshl_b32 s20, s2, 2\ns_add_u32 s20, s20, {FB}")
stamp(a, 2)
poll(a, 2, FA, True)
stamp(a, 3)
G.g1(a); stamp(a, 4)
signal(a, f"s_lshl_b32 s20, s21, 7\ns_lshl_b32 s23, s22, 2\ns_add_u32 s20, s20, s23\ns_add_u32 s20, s20, {F1}")
stamp(a, 5)
poll(a, 2, FB, True)
G.g2_pre(a)
a("s_cmp_lg_u32 s30, 3\ns_cbranch_scc1 L_g1c")
G.loader_all(a, G.G2, 100)
a("v_bfe_u32 v5, v1, 3, 2\nv_lshrrev_b32 v6, 1, v5\nv_and_b32 v5, 1, v5\nv_sub_u32 v6, v6, v5\nv_add_u32 v6, s21, v6\nv_and_b32 v6, 31, v6\nv_and_b32 v5, 7, v1\nv_lshlrev_b32 v5, 2, v5\nv_lshl_add_u32 v5, v6, 7, v5")
poll(a, 5, F1, False)
a("s_branch L_g1j\nL_g1c:"); C.skip(a, "L_g1j"); C.load_r(a); a("s_waitcnt vmcnt(0)"); C.steps(a, 0, 4)
a("L_g1j:\ns_waitcnt vmcnt(0)\ns_barrier")
stamp(a, 6)
G.g2(a); stamp(a, 7)
signal(a, f"s_lshl_b32 s20, s21, 7\ns_lshl_b32 s23, s22, 2\ns_add_u32 s20, s20, s23\ns_add_u32 s20, s20, {F2}")
a("s_cmp_lg_u32 s30, 3\ns_cbranch_scc1 L_g2c")
G.colsum_loader(a)
a("v_bfe_u32 v6, v1, 3, 1\ns_lshl_b32 s20, s44, 1\nv_add_u32 v6, s20, v6\nv_and_b32 v5, 7, v1\nv_lshlrev_b32 v5, 2, v5\nv_lshl_add_u32 v5, v6, 7, v5")
poll(a, 5, F2, False)
a("s_branch L_g2j\nL_g2c:"); C.skip(a, "L_g2j"); C.steps(a, 4, 8); C.finish(a)
a("L_g2j:")
signal(a, f"s_lshl_b32 s20, s2, 2\ns_add_u32 s20, s20, {FY}")
stamp(a, 8)
G.g3(a); stamp(a, 9)
signal(a, f"s_lshl_b32 s20, s44, 7\ns_lshl_b32 s23, s45, 2\ns_add_u32 s20, s20, s23\ns_add_u32 s20, s20, {F3}")
poll(a, 2, FY, True)
G.g4_pre(a)
a("s_cmp_lg_u32 s30, 3\ns_cbranch_scc1 L_g3j")
a("s_lshr_b32 s20, s21, 1\ns_lshl_b32 s20, s20, 7\nv_and_b32 v5, 15, v1\nv_lshlrev_b32 v5, 2, v5\nv_add_u32 v5, s20, v5")
poll(a, 5, F3, False)
a("L_g3j:\ns_waitcnt vmcnt(0)\ns_barrier")
stamp(a, 10)
G.g4(a)
flush(a, 12)
a("L_end:\ns_endpgm")
hdr = "".join(l for l in open(f"cdna_kernels/{NAME}.s.ref") if l.startswith(";   ") or l.startswith("; Kernarg"))
s = hdr + "; @launch grid=(256,1,1) block=(256,1,1) lds=163840\n" + '.amdgcn_target "amdgcn-amd-amdhsa--gfx950"\n.text\n'
s += khead(NAME + "_kernel") + a.text() + '.section .rodata,"a"\n' + kdesc(NAME + "_kernel", 512, 102, 256)
open(sys.argv[1] if len(sys.argv) > 1 else f"cdna_kernels/{NAME}.s", "w").write(s)
```
